```python
import torch

def _softmax(x, axis=-1):
    return torch.softmax(x, dim=axis)
def _gelu(x):
    return torch.nn.functional.gelu(x, approximate="tanh")
def _silu(x):
    return torch.nn.functional.silu(x)
def _sigmoid(x):
    return torch.sigmoid(x)
def _layernorm(x, axis=-1, eps=1e-5):
    m = x.mean(dim=axis, keepdim=True)
    v = x.var(dim=axis, keepdim=True, unbiased=False)
    return (x - m) / torch.sqrt(v + eps)
def _scatter_add(tgt, idx, src, axis=0):
    return tgt.clone().index_add_(axis, idx, src)
def _segment_sum(src, seg, n):
    out = torch.zeros((n,) + src.shape[1:], dtype=src.dtype)
    return out.index_add_(0, seg, src)
def _pad(x, pw):
    flat = tuple(v for pair in reversed(pw) for v in pair)
    return torch.nn.functional.pad(x, flat)

kernel_name = 'gather_scatter__edge_featured_mpnn_egc__graph'

def setup_inputs():

    _w = (lambda a: (lambda t: t.to(torch.bfloat16) if t.is_floating_point() else t)(torch.as_tensor(a)))
    N, deg, D, De = 50000, 16, 64, max(16, 1)
    E = N * deg
    return {
        "x": _w((lambda *s: torch.randn(*s, dtype=torch.bfloat16) * 0.2)(N, D)),
        "e_attr": _w((lambda *s: torch.randn(*s, dtype=torch.bfloat16) * 0.2)(E, De)),
        "src": _w((lambda lo, hi, *s: torch.randint(lo, hi, s))(0, N, E).to(torch.int64)),
        "dst": _w((lambda lo, hi, *s: torch.randint(lo, hi, s))(0, N, E).to(torch.int64)),
        "u_w": _w((lambda *s: torch.randn(*s, dtype=torch.bfloat16) * 0.05)(D, D)),
        "v_w": _w((lambda *s: torch.randn(*s, dtype=torch.bfloat16) * 0.05)(D, D)),
        "g_w": _w((lambda *s: torch.randn(*s, dtype=torch.bfloat16) * 0.2)(2 * D + De, D)),
    }

def reference(x, e_attr, src, dst, u_w, v_w, g_w):
    N, D = x.shape
    g_in = torch.concatenate([x[dst], x[src], e_attr], axis=-1)
    eta = _sigmoid(g_in @ g_w)
    hv = x @ v_w
    msg = eta * hv[src]
    agg = _segment_sum(msg, dst, N)
    return _silu(x @ u_w + agg)
```

```python
import sys, struct, math

NAME = "gather_scatter__edge_featured_mpnn_egc__graph"
N, E = 50000, 800000
NCH, CH = 250, 3200
NB = 256

DEF = dict(
    PRESCALE=1,
    PADLINES=1,
    K1_LD="nt",
    K1_LDI="nt",
    K1_ST="",
    K1_STM="",
    K2_X="",
    K2_E="",
    K2_M="",
    K2_O="",
    PRIO=1,
    WSOFF=0,
    CAP=512,
    SLOTCAP=32,
)


def f2u(x):
    return struct.unpack("<I", struct.pack("<f", x))[0]


NLOG2E = f2u(-1.4426950408889634)
M32 = -(-(1 << 32) * 128 // 3125)
for d in range(N):
    g = (d * M32) >> 32
    assert g == d * 128 // 3125
    b = (g * 3125 + 127) >> 7
    assert 0 <= d - b < 25


class A:
    def __init__(self):
        self.l = []

    def __call__(self, s):
        for ln in s.split("\n"):
            ln = ln.strip()
            if ln:
                self.l.append(("" if ln.endswith(":") else "    ") + ln)

    def text(self):
        return "\n".join(self.l) + "\n"


def vr(a, n):
    return f"v[{a}:{a + n - 1}]"


def srd(o, d, lo, nrec):
    o(f"s_mov_b32 s{d}, s{lo}")
    o(f"s_and_b32 s{d+1}, s{lo+1}, 0xffff")
    if nrec is not None:
        o(f"s_mov_b32 s{d+2}, {nrec}")
    o(f"s_mov_b32 s{d+3}, 0x20000")


def gen(opt):
    O = dict(DEF)
    O.update(opt)
    ATTR = O["WSOFF"]
    META = ATTR + NB * NCH * 1024
    OVATTR = META + NB * NCH * 128
    OVMETA = OVATTR + E * 32
    OVCNT = OVMETA + E * 8
    WTS = OVCNT + 1024
    WSB = 268435456
    assert WTS + 34 * 1024 <= WSB
    CAP = O["CAP"]
    SC = O["SLOTCAP"]
    fl = lambda k: (" " + O[k]) if O[k] else ""

    o = A()
    K1 = "egc_part_kernel"
    K1_LDS = 40960
    CNT1, OVF1 = 32768, 33792
    o(f""".globl {K1}
    .p2align 8
    .type {K1},@function
    {K1}:
    s_cmp_gt_u32 s2, {NCH}
    s_cbranch_scc1 K1_END
    s_load_dwordx4 s[4:7], s[0:1], 8
    s_load_dwordx2 s[8:9], s[0:1], 24
    s_load_dwordx2 s[10:11], s[0:1], 72
    v_lshrrev_b32 v1, 6, v0
    v_and_b32 v2, 63, v0
    v_readfirstlane_b32 s3, v1
    s_cmp_eq_u32 s2, {NCH}
    s_cbranch_scc1 K1_W
    s_mul_i32 s28, s2, {CH}
    s_mul_i32 s29, s3, 320
    s_add_u32 s29, s28, s29
    s_lshl_b32 s30, s29, 2
    s_lshl_b32 s31, s29, 5
    s_add_u32 s32, s31, 4096
    s_add_u32 s33, s31, 8192
    v_lshlrev_b32 v3, 2, v2
    v_lshlrev_b32 v4, 4, v2
    s_waitcnt lgkmcnt(0)""")
    srd(o, 12, 8, E * 4)
    srd(o, 16, 6, E * 4)
    srd(o, 20, 4, E * 32)
    srd(o, 24, 10, WSB)
    DST, SRC, EA = 10, 15, 20
    for i in range(5):
        o(f"buffer_load_dword v{DST+i}, v3, s[12:15], s30 offen offset:{i*256}{fl('K1_LDI')}")
    for i in range(5):
        o(f"buffer_load_dword v{SRC+i}, v3, s[16:19], s30 offen offset:{i*256}{fl('K1_LDI')}")
    for j in range(10):
        o(f"buffer_load_dwordx4 {vr(EA+4*j,4)}, v4, s[20:23], s{31+j//4} offen offset:{(j%4)*1024}{fl('K1_LD')}")
    o("""v_mov_b32 v60, 0
    v_mov_b32 v61, 0
    v_mov_b32 v62, 0
    v_mov_b32 v63, 0
    v_lshlrev_b32 v5, 4, v0""")
    for r in range(4):
        o(f"ds_write_b128 v5, v[60:63] offset:{r*10240}")
    o(f"""s_mov_b32 s34, {M32}
    s_movk_i32 s35, 3125
    s_mov_b32 s36, 64000
    s_lshl_b32 s37, s2, 10
    s_add_u32 s37, s37, {ATTR}
    v_mov_b32 v6, 1
    v_mov_b32 v7, 127
    v_lshlrev_b32 v8, 1, v2
    v_and_b32 v8, 0x7c, v8
    v_lshlrev_b32 v9, 4, v2
    v_and_b32 v9, 16, v9
    s_waitcnt lgkmcnt(0)
    s_barrier
    s_waitcnt vmcnt(15)""")
    G, BK, RK, MT, DS_ = 64, 69, 74, 79, 84
    T0, T1 = 89, 90
    for i in range(5):
        o(f"v_mul_hi_u32 v{G+i}, v{DST+i}, s34")
    for i in range(5):
        o(f"v_lshrrev_b32 v{BK+i}, 1, v{G+i}")
        o(f"v_and_b32 v{BK+i}, 0x3fc, v{BK+i}")
        o(f"ds_add_rtn_u32 v{RK+i}, v{BK+i}, v6 offset:{CNT1}")
    for i in range(5):
        o(f"v_mad_u32_u24 v{T0}, v{G+i}, s35, v7")
        o(f"v_lshrrev_b32 v{T0}, 7, v{T0}")
        o(f"v_sub_u32 v{T0}, v{DST+i}, v{T0}")
        o(f"v_and_b32 v{T1}, 7, v{G+i}")
        o(f"v_lshl_or_b32 v{T1}, v{T1}, 2, 2")
        o(f"v_lshl_or_b32 v{MT+i}, v{T0}, 27, v{T1}")
    o("s_waitcnt vmcnt(10)")
    for i in range(5):
        o(f"v_lshl_or_b32 v{MT+i}, v{SRC+i}, 7, v{MT+i}")
    o("s_waitcnt lgkmcnt(0)")
    IM = G
    for i in range(5):
        o(f"v_cmp_le_u32 vcc, {SC}, v{RK+i}")
        o(f"v_lshl_add_u32 v{IM+i}, v{BK+i}, 3, v{RK+i}")
        o(f"v_lshlrev_b32 v{IM+i}, 2, v{IM+i}")
        o(f"v_lshl_add_u32 v{T0}, v{RK+i}, 5, s37")
        o(f"v_mad_u32_u24 v{DS_+i}, v{BK+i}, s36, v{T0}")
        o(f"s_cbranch_vccnz K1_OV{i}")
        o(f"K1_OVR{i}:")
        o(f"ds_or_b32 v{IM+i}, v{MT+i}")
        o(f"ds_bpermute_b32 v{DST+i}, v8, v{DS_+i}")
        o(f"ds_bpermute_b32 v{SRC+i}, v8, v{DS_+i} offset:128")
    o("s_waitcnt lgkmcnt(0)")
    for i in range(5):
        o(f"v_or_b32 v{DST+i}, v{DST+i}, v9")
        o(f"v_or_b32 v{SRC+i}, v{SRC+i}, v9")
    for j in range(10):
        a = (DST if j % 2 == 0 else SRC) + j // 2
        o("s_waitcnt vmcnt(9)")
        o(f"buffer_store_dwordx4 {vr(EA+4*j,4)}, v{a}, s[24:27], 0 offen{fl('K1_ST')}")
    o("s_barrier")
    o(f"""s_lshl_b32 s38, s2, 7
    s_add_u32 s38, s38, {META}
    s_movk_i32 s39, 32000
    v_and_b32 v91, 0x70, v5""")
    o("v_lshrrev_b32 v92, 3, v0")
    o("v_mad_u32_u24 v93, v92, s39, v91")
    o("v_lshlrev_b32 v94, 2, v92")
    o("v_mad_u32_u24 v95, v94, s36, v91")
    o("v_lshrrev_b32 v96, 5, v91")
    for r in range(4):
        o(f"ds_read_b128 {vr(64+4*r,4)}, v5 offset:{r*10240}")
        if O["PADLINES"]:
            o(f"ds_read_b32 v{80+r}, v94 offset:{CNT1+r*320}")
    o(f"v_mov_b32 v97, {OVF1}")
    o("ds_read_b32 v84, v97")
    o("s_waitcnt lgkmcnt(0)")
    for r in range(4):
        if r == 3:
            o("s_cmp_ge_u32 s3, 2")
            o("s_cbranch_scc1 K1_END")
        o(f"buffer_store_dwordx4 {vr(64+4*r,4)}, v93, s[24:27], s38 offen{fl('K1_STM')}")
        if r < 3:
            o(f"s_add_u32 s38, s38, {80*32000}")
        if O["PADLINES"]:
            o(f"v_min_u32 v{80+r}, {SC}, v{80+r}")
            o(f"v_and_b32 v98, 3, v{80+r}")
            o(f"v_lshrrev_b32 v99, 2, v{80+r}")
            o(f"v_lshl_add_u32 v99, v99, 7, v95")
            o("v_cmp_ne_u32 vcc, 0, v98")
            o("v_cmp_ge_u32 s[40:41], v96, v98")
            o("s_and_b64 exec, vcc, s[40:41]")
            o(f"s_cbranch_execz K1_PL{r}")
            o(f"buffer_store_dwordx4 v[60:63], v99, s[24:27], s37 offen{fl('K1_ST')}")
            o(f"K1_PL{r}:")
            o("s_mov_b64 exec, -1")
            if r < 3:
                o(f"s_add_u32 s37, s37, {80*256000}")
    o(f"""s_cmp_lg_u32 s3, 0
    s_cbranch_scc1 K1_END
    s_lshl_b32 s38, s2, 2
    s_add_u32 s38, s38, {OVCNT}
    s_mov_b64 exec, 1
    buffer_store_dword v84, v60, s[24:27], s38 offen
    K1_END:
    s_endpgm""")
    for i in range(5):
        o(f"""K1_OV{i}:
        s_mov_b64 exec, vcc
        v_mov_b32 v{T0}, {OVF1}
        ds_add_rtn_u32 v{T0}, v{T0}, v6
        v_mov_b32 v92, v{MT+i}
        v_lshrrev_b32 v93, 2, v{BK+i}
        s_waitcnt lgkmcnt(0)
        v_add_u32 v{T0}, s28, v{T0}
        v_lshlrev_b32 v{T1}, 3, v{T0}
        v_add_u32 v{T1}, {OVMETA}, v{T1}
        buffer_store_dwordx2 v[92:93], v{T1}, s[24:27], 0 offen
        v_lshlrev_b32 v{DS_+i}, 5, v{T0}
        v_add_u32 v{DS_+i}, {OVATTR}, v{DS_+i}
        v_lshlrev_b32 v{IM+i}, 5, v{BK+i}
        v_add_u32 v{IM+i}, {(SC-1)*4}, v{IM+i}
        v_mov_b32 v{MT+i}, 1
        s_mov_b64 exec, -1
        s_branch K1_OVR{i}""")
    o(f"""K1_W:
    s_load_dwordx4 s[40:43], s[0:1], 32
    s_load_dwordx2 s[44:45], s[0:1], 48
    v_and_b32 v3, 31, v2
    v_lshlrev_b32 v3, 2, v3
    v_lshrrev_b32 v4, 5, v2
    v_lshl_add_u32 v3, v4, 10, v3
    v_lshlrev_b32 v4, 4, v2
    s_waitcnt lgkmcnt(0)""")
    srd(o, 24, 10, WSB)
    o("s_mov_b32 s28, s3")
    o(f"""K1_WL:
    s_cmp_lt_u32 s28, 13
    s_cselect_b32 s12, s42, s40
    s_cselect_b32 s13, s43, s41
    s_cselect_b32 s29, 9, 13
    s_movk_i32 s14, 8192
    s_cmp_lt_u32 s28, 9
    s_cselect_b32 s12, s44, s12
    s_cselect_b32 s13, s45, s13
    s_cselect_b32 s29, 0, s29
    s_cselect_b32 s14, {144*128}, s14
    s_and_b32 s13, s13, 0xffff
    s_mov_b32 s15, 0x20000
    s_sub_u32 s29, s28, s29
    s_lshl_b32 s29, s29, 11
    s_mov_b32 s30, 1.0""")
    if O["PRESCALE"]:
        o(f"""s_sub_u32 s31, s28, 4
        s_cmp_lt_u32 s31, 5
        s_cselect_b32 s30, {NLOG2E:#x}, s30""")
    for j in range(8):
        o(f"buffer_load_dword v{10+j}, v3, s[12:15], s29 offen offset:{j*128}")
    o("s_waitcnt vmcnt(0)")
    for j in range(8):
        o(f"v_lshlrev_b32 v{20+j}, 16, v{10+j}")
        o(f"v_and_b32 v{30+j}, 0xffff0000, v{10+j}")
        o(f"v_mul_f32 v{20+j}, s30, v{20+j}")
        o(f"v_mul_f32 v{30+j}, s30, v{30+j}")
    for j in range(4):
        o(f"v_cvt_pk_bf16_f32 v{40+j}, v{20+2*j}, v{21+2*j}")
        o(f"v_cvt_pk_bf16_f32 v{44+j}, v{30+2*j}, v{31+2*j}")
    o(f"""s_lshl_b32 s31, s28, 11
    s_add_u32 s31, s31, {WTS}
    buffer_store_dwordx4 v[40:43], v4, s[24:27], s31 offen
    buffer_store_dwordx4 v[44:47], v4, s[24:27], s31 offen offset:1024
    s_add_u32 s28, s28, 10
    s_cmp_lt_u32 s28, 17
    s_waitcnt vmcnt(0)
    s_cbranch_scc1 K1_WL
    s_endpgm""")
    K1_VGPR = 104

    K2 = NAME + "_kernel"
    L_D0, L_OH, L_LUT, L_CNT, L_W = 0x10000, 0x1A000, 0x1E000, 0x1E800, 0x1EC00
    D1OFF = 20480
    K2_LDS = L_W + 34 * 1024
    XR, LP, LD0, LD1, H16, LUTB, OHW, OHR, ONE, ZERO, LOC = 1, 5, 7, 8, 9, 10, 11, 12, 13, 14, 15
    WB, WV, WC, PT, ACC, Z, HV, MSG, X, EC, OHT, OH = 16, 48, 80, 88, 104, 136, 168, 184, 192, 208, 216, 224
    D0, D1, LUTA, OHA, LANE = 232, 236, 237, 238, 239
    F = [240, 244]
    TM = 248
    S_W, S_T, S_MASK, S_BUF, S_R, S_FLAG, S_FIRST, S_C, S_K0, S_N, S_ATB, S_640, S_NL = 3, 24, 25, 26, 28, 29, 30, 31, 32, 33, 34, 35, 36
    S_MB, S_BASE = 37, 38
    mf = lambda d, a, b, c: f"v_mfma_f32_32x32x16_bf16 {vr(d,16)}, {vr(a,4)}, {vr(b,4)}, " + (vr(c, 16) if c is not None else "0")
    prio = lambda p: o(f"s_setprio {p}") if O["PRIO"] else o("s_nop 0")

    o(f""".globl {K2}
    .p2align 8
    .type {K2},@function
    {K2}:
    s_cmp_ge_u32 s2, {NB}
    s_cbranch_scc1 K2_END
    s_load_dwordx2 s[4:5], s[0:1], 0
    s_load_dwordx2 s[6:7], s[0:1], 72
    s_load_dwordx2 s[40:41], s[0:1], 56
    v_lshrrev_b32 v{TM}, 6, v0
    v_and_b32 v{LANE}, 63, v0
    v_readfirstlane_b32 s{S_W}, v{TM}
    s_mul_i32 s{S_MB}, s2, 32000
    s_add_u32 s{S_MB}, s{S_MB}, {META}
    s_add_u32 s18, s{S_MB}, 32000
    s_add_u32 s42, s{S_MB}, 8192
    s_add_u32 s43, s{S_MB}, 16384
    s_add_u32 s44, s{S_MB}, 24576
    v_lshlrev_b32 v{TM+1}, 4, v0
    s_waitcnt lgkmcnt(0)""")
    srd(o, 16, 6, None)
    MR = Z
    for p in range(4):
        so = S_MB if p == 0 else 41 + p
        o(f"buffer_load_dwordx4 {vr(MR+4*p,4)}, v{TM+1}, s[16:19], s{so} offen{fl('K2_M')}")
    srd(o, 8, 4, N * 128)
    srd(o, 12, 6, WSB)
    o(f"""s_lshl_b32 s45, s2, 3
    s_add_u32 s45, s45, s{S_W}
    s_mul_i32 s45, s45, 3125
    s_add_u32 s46, s45, {3125+127}
    s_add_u32 s45, s45, 127
    s_lshr_b32 s45, s45, 7
    s_lshr_b32 s46, s46, 7
    s_lshl_b32 s{S_BASE}, s45, 7
    s_lshl_b32 s22, s46, 7""")
    srd(o, 20, 40, None)
    o(f"""v_lshrrev_b32 v{TM+2}, 4, v{LANE}
    v_xor_b32 v{TM+2}, v{TM+2}, v{LANE}
    v_and_b32 v{TM+2}, 7, v{TM+2}
    v_lshlrev_b32 v{LP}, 4, v{TM+2}
    v_xor_b32 v{LP+1}, 64, v{LP}
    v_lshrrev_b32 v{TM+3}, 3, v{LANE}
    s_lshl_b32 s{S_BUF}, s{S_W}, 13
    s_add_u32 s{S_BUF+1}, s{S_BUF}, 4096""")
    o(f"v_lshl_add_u32 v{TM+4}, v{TM+3}, 7, v{LP}")
    o(f"v_lshl_add_u32 v{TM+5}, v{TM+3}, 7, v{LP+1}")
    o(f"s_mov_b32 m0, s{S_BUF+1}")
    o(f"v_lshlrev_b32 v{TM+6}, 4, v{LANE}")
    for s in range(4):
        o(f"buffer_load_dwordx4 v{TM+4+(s&1)}, s[8:11], s{S_BASE} offen offset:{s*1024} lds")
    o(f"""s_lshl_b32 s45, s{S_W}, 12
    s_add_u32 s46, s45, {L_W}
    s_mov_b32 m0, s46
    s_add_u32 s45, s45, {WTS}""")
    for s in range(4):
        o(f"buffer_load_dwordx4 v{TM+6}, s[12:15], s45 offen offset:{s*1024} lds")
    o(f"""s_and_b32 s45, s{S_W}, 1
    s_lshl_b32 s45, s45, 10
    s_add_u32 s46, s45, {L_W+32768}
    s_mov_b32 m0, s46
    s_add_u32 s45, s45, {WTS+32768}
    buffer_load_dwordx4 v{TM+6}, s[12:15], s45 offen lds""")
    o(f"""v_mov_b32 v{X}, 0
    v_mov_b32 v{X+1}, 0
    v_mov_b32 v{X+2}, 0
    v_mov_b32 v{X+3}, 0
    v_add_u32 v{TM+7}, {L_OH}, v{TM+1}
    ds_write_b128 v{TM+7}, {vr(X,4)}
    ds_write_b128 v{TM+7}, {vr(X,4)} offset:8192
    s_cmp_ge_u32 s{S_W}, 3
    s_cbranch_scc1 K2_Z
    ds_write_b128 v{TM+7}, {vr(X,4)} offset:16384
    s_cmp_lg_u32 s{S_W}, 2
    s_cbranch_scc1 K2_Z
    v_mul_u32_u24 v{TM+2}, 2560, v{LANE}
    v_add_u32 v{TM+2}, {L_D0}, v{TM+2}
    v_lshlrev_b32 v{TM+4}, 2, v{LANE}
    v_add_u32 v{TM+4}, {L_CNT}, v{TM+4}
    s_mov_b64 exec, 0xff
    ds_write_b32 v{TM+4}, v{TM+2}
    s_mov_b64 exec, -1
    K2_Z:""")
    o(f"""v_and_b32 v{TM+2}, 31, v{LANE}
    v_lshrrev_b32 v{TM+4}, 5, v{LANE}
    v_lshlrev_b32 v{H16}, 4, v{TM+4}
    v_bfe_u32 v{TM+5}, v{TM+2}, 1, 3
    v_xor_b32 v{TM+5}, v{TM+5}, v{TM+4}
    v_lshlrev_b32 v{TM+5}, 4, v{TM+5}
    v_lshl_add_u32 v{TM+5}, v{TM+2}, 7, v{TM+5}
    v_add_u32 v{XR}, s{S_BUF}, v{TM+5}
    v_xor_b32 v{XR+1}, 32, v{XR}
    v_xor_b32 v{XR+2}, 64, v{XR}
    v_xor_b32 v{XR+3}, 0x60, v{XR}
    v_lshlrev_b32 v{LUTB}, 10, v{TM+4}
    s_lshl_b32 s45, s{S_W}, 11
    s_add_u32 s45, s45, {L_OH}
    v_lshl_add_u32 v{OHR}, v{TM+2}, 4, v{LUTB}
    v_add_u32 v{OHR}, s45, v{OHR}
    v_add_u32 v{LUTB}, {L_LUT}, v{LUTB}""")
    o(f"""v_bfe_u32 v{TM+5}, v{TM+2}, 2, 1
    v_lshlrev_b32 v{OHW}, 10, v{TM+5}
    v_lshrrev_b32 v{TM+5}, 4, v{TM+2}
    v_lshl_add_u32 v{OHW}, v{TM+5}, 9, v{OHW}
    v_and_b32 v{TM+5}, 8, v{TM+2}
    v_add_u32 v{OHW}, v{TM+5}, v{OHW}
    v_and_b32 v{TM+5}, 3, v{TM+2}
    v_lshl_add_u32 v{OHW}, v{TM+5}, 1, v{OHW}
    v_lshl_add_u32 v{LUTA}, v{TM+2}, 4, v{OHW}
    v_add_u32 v{LUTA}, {L_LUT}, v{LUTA}
    v_add_u32 v{OHW}, s45, v{OHW}
    v_mov_b32 v{ONE}, 0x3f80
    v_mov_b32 v{ZERO}, 0
    s_mov_b32 s{S_MASK}, 0x7fff80
    s_mov_b32 s{S_NL}, {NLOG2E:#x}
    s_mul_i32 s{S_ATB}, s2, 256000
    s_add_u32 s{S_ATB}, s{S_ATB}, {ATTR}
    s_mov_b32 s{S_FIRST}, 1
    v_mov_b32 v{TM}, 4
    v_lshlrev_b32 v{TM+1}, 7, v0
    v_add_u32 v{TM+1}, s{S_ATB}, v{TM+1}
    v_mov_b32 v{TM+2}, {L_CNT}
    s_waitcnt lgkmcnt(0)
    s_barrier
    ds_write_b16 v{LUTA}, v{ONE}""")
    CA, RK = HV, X
    for p in range(4):
        o(f"s_waitcnt vmcnt({9+3-p})")
        for c in range(4):
            i = 4 * p + c
            o(f"v_and_or_b32 v{CA+i}, v{MR+i}, 28, v{TM+2}")
        for c in range(4):
            i = 4 * p + c
            o(f"v_cmpx_ne_u32 vcc, 0, v{MR+i}")
            o(f"ds_add_rtn_u32 v{RK+i}, v{CA+i}, v{TM}")
        o("s_mov_b64 exec, -1")
    if SC == 32:
        o(f"v_or_b32 v{TM+3}, v{MR+3}, v{MR+7}")
        o(f"v_or3_b32 v{TM+3}, v{TM+3}, v{MR+11}, v{MR+15}")
    else:
        o(f"v_mov_b32 v{TM+3}, 0")
        for i in range(16):
            o(f"v_or_b32 v{TM+3}, v{TM+3}, v{MR+i}")
    o(f"""v_and_b32 v{TM+3}, 1, v{TM+3}
    v_cmpx_ne_u32 vcc, 0, v{TM+3}
    ds_write_b32 v{TM+2}, v{TM+3} offset:32
    s_mov_b64 exec, -1""")
    for i in range(16):
        o(f"v_add_u32 v{CA+i}, {(i//4)*65536+(i%4)*32}, v{TM+1}")
    o("s_waitcnt lgkmcnt(0)")
    for p in range(4):
        for c in range(4):
            i = 4 * p + c
            o(f"v_min_u32 v{RK+i}, {L_D0+D1OFF-4}, v{RK+i}")
        for c in range(4):
            i = 4 * p + c
            o(f"v_cmpx_ne_u32 vcc, 0, v{MR+i}")
            o(f"ds_write2st64_b32 v{RK+i}, v{MR+i}, v{CA+i} offset0:0 offset1:{D1OFF//256}")
        o("s_mov_b64 exec, -1")
    o(f"""s_waitcnt vmcnt(0) lgkmcnt(0)
    s_barrier""")

    def group(d0, d1, buf, pre=True):
        ins = []
        for s in range(4):
            ins.append(f"v_and_or_b32 v{d0+s}, v{d0+s}, s{S_MASK}, v{LP+(s&1)}")
        ins.append(f"v_or_b32 v{d1}, v{d1}, v{H16}")
        mem = []
        for s in range(4):
            m = f"s_mov_b32 m0, s{S_BUF+buf}" if s == 0 else "s_add_u32 m0, m0, 1024"
            mem.append((m, f"buffer_load_dwordx4 v{d0+s}, s[8:11], 0 offen lds{fl('K2_X')}"))
        e = f"buffer_load_dwordx4 {vr(F[buf],4)}, v{d1}, s[12:15], 0 offen{fl('K2_E')}"
        return ins, mem, e

    def emit_group(d0, d1, buf):
        ins, mem, e = group(d0, d1, buf)
        for x_ in ins:
            o(x_)
        for m, l in mem:
            o(m)
            o("s_nop 0")
            o(l)
        o(e)

    o(f"""K2_ROUND:
    v_and_b32 v{TM}, 15, v{LANE}
    v_lshlrev_b32 v{TM}, 2, v{TM}
    v_add_u32 v{TM}, {L_CNT}, v{TM}
    ds_read_b32 v{TM}, v{TM}
    s_mul_i32 s45, s{S_W}, 2560
    s_add_u32 s45, s45, {L_D0}
    v_lshrrev_b32 v{LD0}, 3, v{LANE}
    v_lshlrev_b32 v{LD0}, 4, v{LD0}
    v_add_u32 v{LD0}, s45, v{LD0}
    v_and_b32 v{LD1}, 7, v{LANE}
    v_lshlrev_b32 v{LD1}, 2, v{LD1}
    v_bfe_u32 v{TM+1}, v{LANE}, 3, 2
    v_add_u32 v{LD1}, v{LD1}, v{TM+1}
    v_lshl_add_u32 v{LD1}, v{LD1}, 2, s45
    v_lshl_add_u32 v{TM+1}, v{LANE}, 2, s45
    v_mov_b32 v{TM+2}, 0xf87fff80
    v_mov_b32 v{TM+3}, 0x7fffffe0
    v_mul_u32_u24 v{TM+4}, 2560, v{LANE}
    v_add_u32 v{TM+4}, {L_D0}, v{TM+4}
    s_waitcnt lgkmcnt(0)
    v_sub_u32 v{TM+4}, v{TM}, v{TM+4}
    v_cmp_lt_u32 vcc, {CAP*4}, v{TM+4}
    v_readlane_b32 s{S_T}, v{TM+4}, s{S_W}
    s_cmp_eq_u32 s{S_FIRST}, 0
    s_cbranch_scc1 K2_R1
    v_readlane_b32 s{S_FLAG}, v{TM}, 8
    s_mov_b32 s{S_C}, -1
    s_mov_b32 s{S_K0}, 0
    s_mov_b32 s{S_N}, 0
    s_and_b32 s46, vcc_lo, 0xff
    s_cselect_b32 s{S_R}, 0, 16
    s_cselect_b32 s{S_T}, 0, s{S_T}
    K2_R1:
    s_nop 1
    v_add_u32 v{TM+1}, s{S_T}, v{TM+1}
    ds_write2st64_b32 v{TM+1}, v{TM+2}, v{TM+3} offset0:0 offset1:{D1OFF//256}
    ds_write2st64_b32 v{TM+1}, v{TM+2}, v{TM+3} offset0:1 offset1:{D1OFF//256+1}
    ds_read_b128 {vr(D0,4)}, v{LD0}
    ds_read_b32 v{D1}, v{LD1} offset:{D1OFF}
    ds_read_b128 {vr(HV,4)}, v{LD0} offset:128
    ds_read_b32 v{HV+4}, v{LD1} offset:{D1OFF+128}
    ds_read_u8 v{LOC}, v{LD1} offset:3""")
    for s in range(4):
        o(f"ds_read_b128 {vr(X+4*s,4)}, v{XR+s} offset:4096")
    o(f"""s_add_u32 s{S_T}, s{S_T}, 127
    s_lshr_b32 s{S_T}, s{S_T}, 7
    s_waitcnt lgkmcnt(7)""")
    emit_group(D0, D1, 0)
    o("s_waitcnt lgkmcnt(0)")
    emit_group(HV, HV + 4, 1)
    o(f"""v_lshl_add_u32 v{LUTA}, v{LOC}, 1, v{LUTB}
    v_lshl_add_u32 v{OHA}, v{LOC}, 1, v{OHW}
    s_cmp_eq_u32 s{S_FIRST}, 0
    s_cbranch_scc1 K2_R2
    s_mov_b32 s{S_FIRST}, 0
    v_lshlrev_b32 v{TM}, 4, v{LANE}
    v_add_u32 v{TM}, {L_W}, v{TM}""")
    for f in range(8):
        o(f"ds_read_b128 {vr(WB+4*f,4)}, v{TM} offset:{f*1024}")
    for f in range(8):
        o(f"ds_read_b128 {vr(WV+4*f,4)}, v{TM} offset:{(26+f)*1024}")
    for ks in range(4):
        o(f"s_waitcnt lgkmcnt({14-2*ks})")
        for nt in range(2):
            o(mf(Z + 16 * nt, X + 4 * ks, WB + 4 * (2 * ks + nt), None if ks == 0 else Z + 16 * nt))
    for ks in range(4):
        o(f"s_waitcnt lgkmcnt({6-2*ks})")
        for nt in range(2):
            o(mf(ACC + 16 * nt, X + 4 * ks, WV + 4 * (2 * ks + nt), None if ks == 0 else ACC + 16 * nt))
    for f in range(8):
        o(f"ds_read_b128 {vr(WB+4*f,4)}, v{TM} offset:{(8+f)*1024}")
    for f in range(2):
        o(f"ds_read_b128 {vr(WC+4*f,4)}, v{TM} offset:{(16+f)*1024}")
    for f in range(8):
        o(f"ds_read_b128 {vr(WV+4*f,4)}, v{TM} offset:{(18+f)*1024}")
    if O["PRESCALE"]:
        for i in range(32):
            o(f"v_mul_f32 v{Z+i}, s{S_NL}, v{Z+i}")
    for q in range(16):
        o(f"v_cvt_pk_bf16_f32 v{PT+q}, v{Z+2*q}, v{Z+2*q+1}")
    o("K2_R2:")
    o(f"ds_read_b128 {vr(OHT,4)}, v{LUTA}")
    o(f"ds_read_b128 {vr(OHT+4,4)}, v{LUTA} offset:512")
    o(f"ds_read_b128 {vr(D0,4)}, v{LD0} offset:256")
    o(f"ds_read_b32 v{D1}, v{LD1} offset:{D1OFF+256}")
    for i in range(16):
        o(f"v_mov_b32 v{Z+16+i}, 0")
    for i in range(8):
        o(f"v_mov_b32 v{OH+i}, 0")
    o("s_waitcnt vmcnt(5)")
    for s in range(4):
        o(f"ds_read_b128 {vr(X+4*s,4)}, v{XR+s}")
    for i in range(4):
        o(f"v_mov_b32 v{EC+i}, v{F[0]+i}")

    def zchain(nt):
        z = Z + 16 * nt
        l = [mf(z, OHT, PT + 8 * nt, None), mf(z, OHT + 4, PT + 8 * nt + 4, z), mf(z, EC, WC + 4 * nt, z)]
        l += [mf(z, X + 4 * ks, WB + 4 * (2 * ks + nt), z) for ks in range(4)]
        return l

    o("s_waitcnt lgkmcnt(0)")
    for m in zchain(0):
        o(m)
    emit_group(D0, D1, 0)
    if not O["PRESCALE"]:
        o("s_nop 4")
        for i in range(16):
            o(f"v_mul_f32 v{Z+i}, s{S_NL}, v{Z+i}")
    o(f"""s_cmp_eq_u32 s{S_T}, 0
    s_cbranch_scc1 K2_DRAIN""")

    def half(par, nt):
        zc, zn = Z + 16 * nt, Z + 16 * (1 - nt)
        accp = ACC + 16 * (1 - nt)
        ex = [f"v_exp_f32 v{zc+i}, v{zc+i}" for i in range(16)]
        rc = [f"v_rcp_f32 v{zc+i}, v{zc+i}" for i in range(16)]
        cv = [f"v_cvt_pk_bf16_f32 v{MSG+q}, v{zn+2*q}, v{zn+2*q+1}" for q in range(8)]
        hm = [mf(HV, X + 4 * ks, WV + 4 * (2 * ks + nt), None if ks == 0 else HV) for ks in range(4)]
        sm = [mf(accp, OH + 4 * t, MSG + 4 * t, accp) for t in range(2)]
        zm = zchain(1 - nt)
        nb = par ^ 1
        prio(1)
        if nt == 0:
            o(f"ds_read_u8 v{LOC}, v{LD1} offset:{(par+1)*128+3}")
        else:
            o("s_waitcnt lgkmcnt(0)")
        seq = ex[0:2] + [hm[0]] + cv[0:4] + ex[2:3] + [hm[1]] + cv[4:8] + ex[3:4] + [hm[2]] + ex[4:7] + [hm[3]]
        for s_ in seq:
            o(s_)
        if nt == 1:
            o("s_waitcnt vmcnt(5)")
            for s in range(4):
                o(f"ds_read_b128 {vr(X+4*s,4)}, v{XR+s} offset:{nb*4096}")
        for s_ in ex[7:10] + [sm[0]] + ex[10:13] + [sm[1]]:
            o(s_)
        if nt == 0:
            o(f"ds_write_b16 v{OHA}, v{ONE}")
            o(f"ds_read_b128 {vr(OH,4)}, v{OHR}")
            o(f"ds_read_b128 {vr(OH+4,4)}, v{OHR} offset:512")
            o(f"ds_write_b16 v{OHA}, v{ZERO}")
        for s_ in ex[13:16]:
            o(s_)
        prio(0)
        for i in range(16):
            o(f"v_add_f32 v{zc+i}, 1.0, v{zc+i}")
        if nt == 1:
            for i in range(4):
                o(f"v_mov_b32 v{EC+i}, v{F[nb]+i}")
        prio(1)
        if nt == 0:
            o(rc[0]); o(rc[1]); o(zm[0])
            o("s_waitcnt lgkmcnt(4)")
            o(rc[2]); o(rc[3])
            o(f"v_lshl_add_u32 v{LUTA}, v{LOC}, 1, v{LUTB}")
            o(zm[1])
            o(f"ds_read_b128 {vr(OHT,4)}, v{LUTA}")
            o(f"ds_read_b128 {vr(OHT+4,4)}, v{LUTA} offset:512")
            o(rc[4]); o(rc[5]); o(zm[2])
            o(f"ds_read_b128 {vr(D0,4)}, v{LD0} offset:{(par+3)*128}")
            o(f"ds_read_b32 v{D1}, v{LD1} offset:{D1OFF+(par+3)*128}")
            o(rc[6]); o(rc[7]); o(zm[3])
            o(rc[8]); o(rc[9]); o(rc[10]); o(zm[4])
            o(rc[11]); o(rc[12]); o(rc[13]); o(zm[5])
            o(rc[14]); o(rc[15])
            if par == 1:
                o(f"v_add_u32 v{LD0}, 0x100, v{LD0}")
                o(f"v_add_u32 v{LD1}, 0x100, v{LD1}")
            o(zm[6])
        else:
            ins, mem, e = group(D0, D1, nb)
            o(rc[0]); o(rc[1]); o(zm[0])
            o(rc[2]); o(rc[3]); o(ins[0]); o(ins[1]); o(zm[1])
            o(rc[4]); o(rc[5]); o(ins[2]); o(ins[3]); o(zm[2])
            o(rc[6]); o(rc[7]); o(ins[4])
            o(f"v_lshl_add_u32 v{OHA}, v{LOC}, 1, v{OHW}")
            o("s_waitcnt lgkmcnt(0)")
            o(mem[0][0])
            o(zm[3])
            o(mem[0][1]); o(mem[1][0])
            o(rc[8]); o(mem[1][1]); o(mem[2][0]); o(rc[9]); o(rc[10]); o(zm[4])
            o(mem[2][1]); o(mem[3][0])
            o(rc[11]); o(mem[3][1]); o(rc[12]); o(rc[13]); o(zm[5])
            o(e)
            o(rc[14]); o(rc[15]); o(zm[6])
        prio(0)
        for i in range(16):
            o(f"v_mul_f32 v{zc+i}, v{zc+i}, v{HV+i}")
        if not O["PRESCALE"]:
            for i in range(16):
                o(f"v_mul_f32 v{zn+i}, s{S_NL}, v{zn+i}")

    o("s_nop 7")
    o("K2_LOOP:")
    for par in range(2):
        half(par, 0)
        half(par, 1)
        o(f"s_sub_u32 s{S_T}, s{S_T}, 1")
        o(f"s_cmp_eq_u32 s{S_T}, 0")
        o("s_cbranch_scc1 K2_DRAIN" if par == 0 else "s_cbranch_scc0 K2_LOOP")
    o("K2_DRAIN:")
    for q in range(8):
        o(f"v_cvt_pk_bf16_f32 v{MSG+q}, v{Z+16+2*q}, v{Z+16+2*q+1}")
    o("s_nop 1")
    for t in range(2):
        o(mf(ACC + 16, OH + 4 * t, MSG + 4 * t, ACC + 16))
    o(f"""s_cmp_lt_u32 s{S_R}, 16
    s_cbranch_scc1 K2_NEXT
    s_cmp_lg_u32 s{S_FLAG}, 0
    s_cbranch_scc1 K2_OVF
    K2_EPI:
    v_and_b32 v{TM}, 31, v{LANE}
    v_lshlrev_b32 v{TM}, 2, v{TM}
    v_lshl_add_u32 v{TM}, v{H16}, 5, v{TM}
    s_nop 7""")
    NR = 13
    regs = [(ACC + 16 * nt + i, Z + 16 * nt + i) for nt in range(2) for i in range(NR)]
    for a, t in regs:
        o(f"v_mul_f32 v{t}, s{S_NL}, v{a}")
    for a, t in regs:
        o(f"v_exp_f32 v{t}, v{t}")
    for a, t in regs:
        o(f"v_add_f32 v{t}, 1.0, v{t}")
    for a, t in regs:
        o(f"v_rcp_f32 v{t}, v{t}")
    for a, t in regs:
        o(f"v_mul_f32 v{t}, v{t}, v{a}")
    for i in range(NR):
        o(f"v_cvt_pk_bf16_f32 v{HV+i}, v{Z+i}, v{Z+16+i}")
        o(f"buffer_store_dword v{HV+i}, v{TM}, s[20:23], s{S_BASE} offen offset:{(8*(i//4)+i%4)*128}{fl('K2_O')}")
    o("""K2_END:
    s_endpgm""")
    o(f"""K2_OVF:
    s_add_u32 s{S_K0}, s{S_K0}, 512
    s_cmp_lt_u32 s{S_K0}, s{S_N}
    s_cbranch_scc1 K2_NEXT
    K2_OVS:
    s_add_u32 s{S_C}, s{S_C}, 1
    s_cmp_ge_u32 s{S_C}, {NCH}
    s_cbranch_scc1 K2_EPI
    v_add_u32 v{TM}, s{S_C}, v{LANE}
    v_lshlrev_b32 v{TM+1}, 2, v{TM}
    v_add_u32 v{TM+1}, {OVCNT}, v{TM+1}
    buffer_load_dword v{TM+1}, v{TM+1}, s[12:15], 0 offen
    v_cmp_gt_u32 vcc, {NCH}, v{TM}
    s_waitcnt vmcnt(0)
    v_cmp_ne_u32 s[46:47], 0, v{TM+1}
    s_and_b64 s[46:47], s[46:47], vcc
    s_cbranch_scc1 K2_OVG
    s_add_u32 s{S_C}, s{S_C}, 63
    s_branch K2_OVS
    K2_OVG:
    s_ff1_i32_b64 s45, s[46:47]
    s_add_u32 s{S_C}, s{S_C}, s45
    s_mov_b32 s{S_K0}, 0
    v_readlane_b32 s{S_N}, v{TM+1}, s45
    K2_NEXT:
    s_waitcnt vmcnt(0) lgkmcnt(0)
    s_barrier
    v_mov_b32 v{TM+2}, {L_CNT}
    v_lshl_add_u32 v{TM+3}, v{LANE}, 2, v{TM+2}
    v_mul_u32_u24 v{TM+4}, 2560, v{LANE}
    v_add_u32 v{TM+4}, {L_D0}, v{TM+4}
    s_mov_b64 exec, 0xff
    ds_write_b32 v{TM+3}, v{TM+4}
    s_mov_b64 exec, -1
    s_waitcnt lgkmcnt(0)
    s_barrier
    s_cmp_lt_u32 s{S_R}, 16
    s_cbranch_scc0 K2_NOV
    s_lshl_b32 s45, s{S_R}, 11
    v_lshl_add_u32 v{TM+3}, v0, 2, s45
    buffer_load_dword v{TM+4}, v{TM+3}, s[16:19], s{S_MB} offen
    v_lshl_add_u32 v{TM+6}, v{TM+3}, 3, s{S_ATB}
    s_add_u32 s{S_R}, s{S_R}, 1
    s_waitcnt vmcnt(0)
    s_branch K2_BLD
    K2_NOV:
    v_add_u32 v{TM+3}, s{S_K0}, v0
    v_cmp_gt_u32 vcc, s{S_N}, v{TM+3}
    s_mul_i32 s45, s{S_C}, {CH}
    v_add_u32 v{TM+3}, s45, v{TM+3}
    v_lshlrev_b32 v{TM+6}, 3, v{TM+3}
    v_add_u32 v{TM+6}, {OVMETA}, v{TM+6}
    buffer_load_dwordx2 v[{TM+4}:{TM+5}], v{TM+6}, s[12:15], 0 offen
    v_lshlrev_b32 v{TM+6}, 5, v{TM+3}
    v_add_u32 v{TM+6}, {OVATTR}, v{TM+6}
    s_waitcnt vmcnt(0)
    v_cmp_eq_u32 s[46:47], s2, v{TM+5}
    s_and_b64 vcc, vcc, s[46:47]
    s_nop 1
    v_cndmask_b32 v{TM+4}, 0, v{TM+4}, vcc
    K2_BLD:
    v_and_or_b32 v{TM+3}, v{TM+4}, 28, v{TM+2}
    v_mov_b32 v{TM}, 4
    v_cmpx_ne_u32 vcc, 0, v{TM+4}
    ds_add_rtn_u32 v{TM+5}, v{TM+3}, v{TM}
    s_waitcnt lgkmcnt(0)
    ds_write2st64_b32 v{TM+5}, v{TM+4}, v{TM+6} offset0:0 offset1:{D1OFF//256}
    s_mov_b64 exec, -1
    s_waitcnt lgkmcnt(0)
    s_barrier
    s_branch K2_ROUND""")

    head = f"""; Edge-gated MPNN layer: kernel 1 partitions edges by destination bucket (fixed slots) and
; @launch kernel={K1} grid=({NCH+1},1,1) block=(640,1,1) lds={K1_LDS}
; @launch kernel={K2} grid=({NB},1,1) block=(512,1,1) lds={K2_LDS}
.amdgcn_target "amdgcn-amd-amdhsa--gfx950"
.text
"""

    def desc(name, vg):
        return f""".amdhsa_kernel {name}
  .amdhsa_next_free_vgpr {vg}
  .amdhsa_next_free_sgpr 102
  .amdhsa_accum_offset {vg}
  .amdhsa_group_segment_fixed_size 0
  .amdhsa_kernarg_size 80
  .amdhsa_user_sgpr_count 2
  .amdhsa_user_sgpr_kernarg_segment_ptr 1
  .amdhsa_system_sgpr_workgroup_id_x 1
  .amdhsa_float_denorm_mode_32 3
.end_amdhsa_kernel
"""
    tail = '.section .rodata,"a"\n.p2align 6\n' + desc(K1, K1_VGPR) + ".p2align 6\n" + desc(K2, 256)
    return head + o.text() + tail


if __name__ == "__main__":
    out = sys.argv[1]
    opt = {}
    for a in sys.argv[2:]:
        k, v = a.split("=", 1)
        opt[k] = int(v, 0) if isinstance(DEF[k], int) else v.replace("+", " ")
    open(out, "w").write(gen(opt))
```

```python
import sys, struct, math

NAME = "gather_scatter__edge_featured_mpnn_egc__graph"
N, E = 50000, 800000
NCH, CH = 250, 3200
NB = 256

DEF = dict(
    PRESCALE=1,
    PADLINES=1,
    K1_LD="nt",
    K1_LDI="nt",
    K1_ST="",
    K1_STM="",
    K2_X="",
    K2_E="",
    K2_M="",
    K2_O="",
    PRIO=1,
    WSOFF=0,
    CAP=512,
    STAMP=0,
    FINE=0,
    K1PRE0=10,
    K1PRE=10,
    K1MPOS=0,
    K1ABL="",
    PFX=0,
    PFE=1,
    PFPOS=0,
    DLY=0,
    DLYM=4,
    TST=0,
    GS=1024,
    ABL="",
    SLOTCAP=32,
)


def f2u(x):
    return struct.unpack("<I", struct.pack("<f", x))[0]


NLOG2E = f2u(-1.4426950408889634)
M32 = -(-(1 << 32) * 128 // 3125)
for d in range(N):
    g = (d * M32) >> 32
    assert g == d * 128 // 3125
    b = (g * 3125 + 127) >> 7
    assert 0 <= d - b < 25


class A:
    def __init__(self):
        self.l = []

    def __call__(self, s):
        for ln in s.split("\n"):
            ln = ln.strip()
            if ln:
                self.l.append(("" if ln.endswith(":") else "    ") + ln)

    def text(self):
        return "\n".join(self.l) + "\n"


def vr(a, n):
    return f"v[{a}:{a + n - 1}]"


def srd(o, d, lo, nrec):
    o(f"s_mov_b32 s{d}, s{lo}")
    o(f"s_and_b32 s{d+1}, s{lo+1}, 0xffff")
    if nrec is not None:
        o(f"s_mov_b32 s{d+2}, {nrec}")
    o(f"s_mov_b32 s{d+3}, 0x20000")


def gen(opt):
    O = dict(DEF)
    O.update(opt)
    ATTR = O["WSOFF"]
    GS = O["GS"]
    META = ATTR + NB * NCH * GS
    OVATTR = META + NB * NCH * 128
    OVMETA = OVATTR + E * 32
    OVCNT = OVMETA + E * 8
    WTS = OVCNT + 1024
    WSB = 268435456
    assert WTS + 34 * 1024 <= WSB
    CAP = O["CAP"]
    SC = O["SLOTCAP"]
    fl = lambda k: (" " + O[k]) if O[k] else ""

    o = A()
    SOFF = 200 << 20
    st = [0]

    def stamp(kern, first=False):
        if not (O["STAMP"] & kern):
            return
        o("s_memrealtime s[60:61]")
        o("s_memtime s[62:63]")
        o("s_waitcnt lgkmcnt(0)")
        o(f"s_mov_b32 s{64+2*st[0]}, s62")
        o(f"s_mov_b32 s{65+2*st[0]}, s60")
        st[0] += 1

    def fine():
        if O["FINE"]:
            stamp(2)

    def stamp_out(kern, srd_, wv, nw, t):
        if not (O["STAMP"] & kern):
            return
        o("s_waitcnt vmcnt(0)")
        stamp(kern)
        o(f"s_mul_i32 s58, s2, {nw}")
        o(f"s_add_u32 s58, s58, s{wv}")
        o("s_lshl_b32 s58, s58, 7")
        o(f"s_add_u32 s58, s58, {SOFF + ((4 << 20) if (kern == 1 and O['STAMP'] == 3) else 0)}")
        o("s_waitcnt lgkmcnt(0)")
        o("s_mov_b64 exec, 1")
        o(f"v_mov_b32 v{t}, 0")
        rs = [64 + i for i in range(2 * st[0])]
        for i, r in enumerate(rs):
            o(f"v_mov_b32 v{t+1}, s{r}")
            o(f"buffer_store_dword v{t+1}, v{t}, s[{srd_}:{srd_+3}], s58 offen offset:{4*i}")
        sys.stderr.write(f"stamps: soff={SOFF} sn={st[0]} nw={nw}\n")
        st[0] = 0
    K1 = "egc_part_kernel"
    K1_LDS = 40960
    CNT1, OVF1 = 32768, 33792
    o(f""".globl {K1}
    .p2align 8
    .type {K1},@function
    {K1}:
    s_cmp_gt_u32 s2, {NCH}
    s_cbranch_scc1 K1_END
    s_load_dwordx4 s[4:7], s[0:1], 8
    s_load_dwordx2 s[8:9], s[0:1], 24
    s_load_dwordx2 s[10:11], s[0:1], 72
    v_lshrrev_b32 v1, 6, v0
    v_and_b32 v2, 63, v0
    v_readfirstlane_b32 s3, v1
    s_cmp_eq_u32 s2, {NCH}
    s_cbranch_scc1 K1_W
    s_mul_i32 s28, s2, {CH}
    s_mul_i32 s29, s3, 320
    s_add_u32 s29, s28, s29
    s_lshl_b32 s30, s29, 2
    s_lshl_b32 s31, s29, 5
    s_add_u32 s32, s31, 4096
    s_add_u32 s33, s31, 8192
    v_lshlrev_b32 v3, 2, v2
    v_lshlrev_b32 v4, 4, v2
    s_waitcnt lgkmcnt(0)""")
    stamp(1)
    srd(o, 12, 8, E * 4)
    srd(o, 16, 6, E * 4)
    srd(o, 20, 4, E * 32)
    srd(o, 24, 10, WSB)
    DST, SRC, EA = 10, 15, 20
    for i in range(5):
        o(f"buffer_load_dword v{DST+i}, v3, s[12:15], s30 offen offset:{i*256}{fl('K1_LDI')}")
    for i in range(5):
        o(f"buffer_load_dword v{SRC+i}, v3, s[16:19], s30 offen offset:{i*256}{fl('K1_LDI')}")
    ops = []
    for i in range(5):
        ops.append(("D", i))
    for i in range(5):
        ops.append(("S", i))

    def wait_for(tag):
        n = len(ops) - 1 - ops.index(tag)
        o(f"s_waitcnt vmcnt({n})")

    def eload(j):
        o(f"buffer_load_dwordx4 {vr(EA+4*j,4)}, v4, s[20:23], s{31+j//4} offen offset:{(j%4)*1024}{fl('K1_LD')}")
        ops.append(("E", j))
    NPRE0, NPRE = O["K1PRE0"], O["K1PRE"]
    for j in range(NPRE0):
        eload(j)
    stamp(1)
    o("""v_mov_b32 v60, 0
    v_mov_b32 v61, 0
    v_mov_b32 v62, 0
    v_mov_b32 v63, 0
    v_lshlrev_b32 v5, 4, v0""")
    for r in range(4):
        o(f"ds_write_b128 v5, v[60:63] offset:{r*10240}")
    o(f"""s_mov_b32 s34, {M32}
    s_movk_i32 s35, 3125
    s_mov_b32 s36, {NCH*GS//4}
    s_mul_i32 s37, s2, {GS}
    s_add_u32 s37, s37, {ATTR}
    v_mov_b32 v6, 1
    v_mov_b32 v7, 127
    v_lshlrev_b32 v8, 1, v2
    v_and_b32 v8, 0x7c, v8
    v_lshlrev_b32 v9, 4, v2
    v_and_b32 v9, 16, v9
    s_waitcnt lgkmcnt(0)
    s_barrier""")
    for j in range(NPRE0, NPRE):
        eload(j)
    wait_for(("D", 4))
    stamp(1)
    G, BK, RK, MT, DS_ = 64, 69, 74, 79, 84
    T0, T1 = 89, 90
    for i in range(5):
        o(f"v_mul_hi_u32 v{G+i}, v{DST+i}, s34")
    for i in range(5):
        o(f"v_lshrrev_b32 v{BK+i}, 1, v{G+i}")
        o(f"v_and_b32 v{BK+i}, 0x3fc, v{BK+i}")
        o(f"ds_add_rtn_u32 v{RK+i}, v{BK+i}, v6 offset:{CNT1}")
    for i in range(5):
        o(f"v_mad_u32_u24 v{T0}, v{G+i}, s35, v7")
        o(f"v_lshrrev_b32 v{T0}, 7, v{T0}")
        o(f"v_sub_u32 v{T0}, v{DST+i}, v{T0}")
        o(f"v_and_b32 v{T1}, 7, v{G+i}")
        o(f"v_lshl_or_b32 v{T1}, v{T1}, 2, 2")
        o(f"v_lshl_or_b32 v{MT+i}, v{T0}, 27, v{T1}")
    wait_for(("S", 4))
    for i in range(5):
        o(f"v_lshl_or_b32 v{MT+i}, v{SRC+i}, 7, v{MT+i}")
    o("s_waitcnt lgkmcnt(0)")
    IM = G
    for i in range(5):
        o(f"v_cmp_le_u32 vcc, {SC}, v{RK+i}")
        o(f"v_lshl_add_u32 v{IM+i}, v{BK+i}, 3, v{RK+i}")
        o(f"v_lshlrev_b32 v{IM+i}, 2, v{IM+i}")
        o(f"v_lshl_add_u32 v{T0}, v{RK+i}, 5, s37")
        o(f"v_mad_u32_u24 v{DS_+i}, v{BK+i}, s36, v{T0}")
        o(f"s_cbranch_vccnz K1_OV{i}")
        o(f"K1_OVR{i}:")
        o(f"ds_or_b32 v{IM+i}, v{MT+i}")
        o(f"ds_bpermute_b32 v{DST+i}, v8, v{DS_+i}")
        o(f"ds_bpermute_b32 v{SRC+i}, v8, v{DS_+i} offset:128")
    o(f"""s_lshl_b32 s38, s2, 7
    s_add_u32 s38, s38, {META}
    s_movk_i32 s39, 32000
    v_and_b32 v91, 0x70, v5
    v_lshrrev_b32 v92, 3, v0
    v_mad_u32_u24 v93, v92, s39, v91
    v_mov_b32 v97, {OVF1}
    s_add_u32 s40, s38, {80*32000}
    s_add_u32 s41, s38, {160*32000}
    s_add_u32 s42, s38, {240*32000}
    s_cmp_lt_u32 s3, 2
    s_cselect_b32 s42, s42, {WSB}
    s_lshl_b32 s43, s2, 2
    s_add_u32 s43, s43, {OVCNT}
    s_cmp_eq_u32 s3, 0
    s_cselect_b32 s43, s43, {WSB}
    s_waitcnt lgkmcnt(0)""")
    for i in range(5):
        o(f"v_or_b32 v{DST+i}, v{DST+i}, v9")
        o(f"v_or_b32 v{SRC+i}, v{SRC+i}, v9")
    stamp(1)

    def meta_read():
        o("s_barrier")
        for r in range(4):
            o(f"ds_read_b128 {vr(64+4*r,4)}, v5 offset:{r*10240}")
        o("ds_read_b32 v84, v97")

    def meta_store():
        o("s_waitcnt lgkmcnt(0)")
        for r in range(4):
            if "M" not in O["K1ABL"]:
                o(f"buffer_store_dwordx4 {vr(64+4*r,4)}, v93, s[24:27], s{[38,40,41,42][r]} offen{fl('K1_STM')}")
                ops.append(("M", r))
        o("s_mov_b64 exec, 1")
        o("buffer_store_dword v84, v60, s[24:27], s43 offen")
        ops.append(("M", 4))
        o("s_mov_b64 exec, -1")

    for j in range(10):
        if j == O["K1MPOS"]:
            meta_read()
        a = (DST if j % 2 == 0 else SRC) + j // 2
        wait_for(("E", j))
        if j + NPRE < 10:
            eload(j + NPRE)
        if "L" in O["K1ABL"]:
            o(f"buffer_store_dwordx4 {vr(EA+4*j,4)}, v4, s[24:27], s{31+j//4} offen offset:{(j%4)*1024}{fl('K1_ST')}")
        else:
            o(f"buffer_store_dwordx4 {vr(EA+4*j,4)}, v{a}, s[24:27], 0 offen{fl('K1_ST')}")
        ops.append(("W", j))
        if j == O["K1MPOS"]:
            meta_store()
    stamp(1)
    if O["K1MPOS"] >= 10:
        meta_read()
        meta_store()
    stamp(1)
    stamp(1)
    stamp_out(1, 24, 3, 10, 100)
    o("""K1_END:
    s_endpgm""")
    for i in range(5):
        o(f"""K1_OV{i}:
        s_mov_b64 exec, vcc
        v_mov_b32 v{T0}, {OVF1}
        ds_add_rtn_u32 v{T0}, v{T0}, v6
        v_mov_b32 v92, v{MT+i}
        v_lshrrev_b32 v93, 2, v{BK+i}
        s_waitcnt lgkmcnt(0)
        v_add_u32 v{T0}, s28, v{T0}
        v_lshlrev_b32 v{T1}, 3, v{T0}
        v_add_u32 v{T1}, {OVMETA}, v{T1}
        buffer_store_dwordx2 v[92:93], v{T1}, s[24:27], 0 offen
        v_lshlrev_b32 v{DS_+i}, 5, v{T0}
        v_add_u32 v{DS_+i}, {OVATTR}, v{DS_+i}
        v_lshlrev_b32 v{IM+i}, 5, v{BK+i}
        v_add_u32 v{IM+i}, {(SC-1)*4}, v{IM+i}
        v_mov_b32 v{MT+i}, 1
        s_mov_b64 exec, -1
        s_branch K1_OVR{i}""")
    o(f"""K1_W:
    s_load_dwordx4 s[40:43], s[0:1], 32
    s_load_dwordx2 s[44:45], s[0:1], 48
    v_and_b32 v3, 31, v2
    v_lshlrev_b32 v3, 2, v3
    v_lshrrev_b32 v4, 5, v2
    v_lshl_add_u32 v3, v4, 10, v3
    v_lshlrev_b32 v4, 4, v2
    s_waitcnt lgkmcnt(0)""")
    srd(o, 24, 10, WSB)
    o("s_mov_b32 s28, s3")
    o(f"""K1_WL:
    s_cmp_lt_u32 s28, 13
    s_cselect_b32 s12, s42, s40
    s_cselect_b32 s13, s43, s41
    s_cselect_b32 s29, 9, 13
    s_movk_i32 s14, 8192
    s_cmp_lt_u32 s28, 9
    s_cselect_b32 s12, s44, s12
    s_cselect_b32 s13, s45, s13
    s_cselect_b32 s29, 0, s29
    s_cselect_b32 s14, {144*128}, s14
    s_and_b32 s13, s13, 0xffff
    s_mov_b32 s15, 0x20000
    s_sub_u32 s29, s28, s29
    s_lshl_b32 s29, s29, 11
    s_mov_b32 s30, 1.0""")
    if O["PRESCALE"]:
        o(f"""s_sub_u32 s31, s28, 4
        s_cmp_lt_u32 s31, 5
        s_cselect_b32 s30, {NLOG2E:#x}, s30""")
    for j in range(8):
        o(f"buffer_load_dword v{10+j}, v3, s[12:15], s29 offen offset:{j*128}")
    o("s_waitcnt vmcnt(0)")
    for j in range(8):
        o(f"v_lshlrev_b32 v{20+j}, 16, v{10+j}")
        o(f"v_and_b32 v{30+j}, 0xffff0000, v{10+j}")
        o(f"v_mul_f32 v{20+j}, s30, v{20+j}")
        o(f"v_mul_f32 v{30+j}, s30, v{30+j}")
    for j in range(4):
        o(f"v_cvt_pk_bf16_f32 v{40+j}, v{20+2*j}, v{21+2*j}")
        o(f"v_cvt_pk_bf16_f32 v{44+j}, v{30+2*j}, v{31+2*j}")
    o(f"""s_lshl_b32 s31, s28, 11
    s_add_u32 s31, s31, {WTS}
    buffer_store_dwordx4 v[40:43], v4, s[24:27], s31 offen
    buffer_store_dwordx4 v[44:47], v4, s[24:27], s31 offen offset:1024
    s_add_u32 s28, s28, 10
    s_cmp_lt_u32 s28, 17
    s_waitcnt vmcnt(0)
    s_cbranch_scc1 K1_WL
    s_endpgm""")
    K1_VGPR = 104

    K2 = NAME + "_kernel"
    L_D0, L_OH, L_LUT, L_CNT, L_W = 0x10000, 0x1A000, 0x1E000, 0x1E800, 0x1EC00
    D1OFF = 20480
    K2_LDS = L_W + 34 * 1024
    XR, LP, LD0, LD1, H16, LUTB, OHW, OHR, ONE, ZERO, LOC = 1, 5, 7, 8, 9, 10, 11, 12, 13, 14, 15
    WB, WV, WC, PT, ACC, Z, HV, MSG, X, EC, OHT, OH = 16, 48, 80, 88, 104, 136, 168, 184, 192, 208, 216, 224
    D0, D1, LUTA, OHA, LANE = 232, 236, 237, 238, 239
    F = [240, 244]
    TM = 248
    S_W, S_T, S_MASK, S_BUF, S_R, S_FLAG, S_FIRST, S_C, S_K0, S_N, S_ATB, S_640, S_NL = 3, 24, 25, 26, 28, 29, 30, 31, 32, 33, 34, 35, 36
    S_MB, S_BASE = 37, 38
    mf = lambda d, a, b, c: f"v_mfma_f32_32x32x16_bf16 {vr(d,16)}, {vr(a,4)}, {vr(b,4)}, " + (vr(c, 16) if c is not None else "0")
    prio = lambda p: o(f"s_setprio {p}") if O["PRIO"] else o("s_nop 0")

    o(f""".globl {K2}
    .p2align 8
    .type {K2},@function
    {K2}:
    s_cmp_ge_u32 s2, {NB}
    s_cbranch_scc1 K2_END
    s_load_dwordx2 s[4:5], s[0:1], 0
    s_load_dwordx2 s[6:7], s[0:1], 72
    s_load_dwordx2 s[40:41], s[0:1], 56
    v_lshrrev_b32 v{TM}, 6, v0
    v_and_b32 v{LANE}, 63, v0
    v_readfirstlane_b32 s{S_W}, v{TM}
    s_mul_i32 s{S_MB}, s2, 32000
    s_add_u32 s{S_MB}, s{S_MB}, {META}
    s_add_u32 s18, s{S_MB}, 32000
    s_add_u32 s42, s{S_MB}, 8192
    s_add_u32 s43, s{S_MB}, 16384
    s_add_u32 s44, s{S_MB}, 24576
    v_lshlrev_b32 v{TM+1}, 4, v0
    s_waitcnt lgkmcnt(0)""")
    stamp(2, True)
    srd(o, 16, 6, None)
    MR = Z
    for p in range(4):
        so = S_MB if p == 0 else 41 + p
        o(f"buffer_load_dwordx4 {vr(MR+4*p,4)}, v{TM+1}, s[16:19], s{so} offen{fl('K2_M')}")
    fine()
    srd(o, 8, 4, N * 128)
    srd(o, 12, 6, WSB)
    o(f"""s_lshl_b32 s45, s2, 3
    s_add_u32 s45, s45, s{S_W}
    s_mul_i32 s45, s45, 3125
    s_add_u32 s46, s45, {3125+127}
    s_add_u32 s45, s45, 127
    s_lshr_b32 s45, s45, 7
    s_lshr_b32 s46, s46, 7
    s_lshl_b32 s{S_BASE}, s45, 7
    s_lshl_b32 s22, s46, 7""")
    srd(o, 20, 40, None)
    o(f"""v_lshrrev_b32 v{TM+2}, 4, v{LANE}
    v_xor_b32 v{TM+2}, v{TM+2}, v{LANE}
    v_and_b32 v{TM+2}, 7, v{TM+2}
    v_lshlrev_b32 v{LP}, 4, v{TM+2}
    v_xor_b32 v{LP+1}, 64, v{LP}
    v_lshrrev_b32 v{TM+3}, 3, v{LANE}
    s_lshl_b32 s{S_BUF}, s{S_W}, 13
    s_add_u32 s{S_BUF+1}, s{S_BUF}, 4096""")
    o(f"v_lshl_add_u32 v{TM+4}, v{TM+3}, 7, v{LP}")
    o(f"v_lshl_add_u32 v{TM+5}, v{TM+3}, 7, v{LP+1}")
    o(f"s_mov_b32 m0, s{S_BUF+1}")
    o(f"v_lshlrev_b32 v{TM+6}, 4, v{LANE}")
    for s in range(4):
        o(f"buffer_load_dwordx4 v{TM+4+(s&1)}, s[8:11], s{S_BASE} offen offset:{s*1024} lds")
    fine()
    o(f"""s_lshl_b32 s45, s{S_W}, 12
    s_add_u32 s46, s45, {L_W}
    s_mov_b32 m0, s46
    s_add_u32 s45, s45, {WTS}""")
    for s in range(4):
        o(f"buffer_load_dwordx4 v{TM+6}, s[12:15], s45 offen offset:{s*1024} lds")
    o(f"""s_and_b32 s45, s{S_W}, 1
    s_lshl_b32 s45, s45, 10
    s_add_u32 s46, s45, {L_W+32768}
    s_mov_b32 m0, s46
    s_add_u32 s45, s45, {WTS+32768}
    buffer_load_dwordx4 v{TM+6}, s[12:15], s45 offen lds""")
    fine()
    o(f"""v_mov_b32 v{X}, 0
    v_mov_b32 v{X+1}, 0
    v_mov_b32 v{X+2}, 0
    v_mov_b32 v{X+3}, 0
    v_add_u32 v{TM+7}, {L_OH}, v{TM+1}
    ds_write_b128 v{TM+7}, {vr(X,4)}
    ds_write_b128 v{TM+7}, {vr(X,4)} offset:8192
    s_cmp_ge_u32 s{S_W}, 3
    s_cbranch_scc1 K2_Z
    ds_write_b128 v{TM+7}, {vr(X,4)} offset:16384
    s_cmp_lg_u32 s{S_W}, 2
    s_cbranch_scc1 K2_Z
    v_mul_u32_u24 v{TM+2}, 2560, v{LANE}
    v_add_u32 v{TM+2}, {L_D0}, v{TM+2}
    v_lshlrev_b32 v{TM+4}, 2, v{LANE}
    v_add_u32 v{TM+4}, {L_CNT}, v{TM+4}
    s_mov_b64 exec, 0xff
    ds_write_b32 v{TM+4}, v{TM+2}
    s_mov_b64 exec, -1
    K2_Z:""")
    o(f"""v_and_b32 v{TM+2}, 31, v{LANE}
    v_lshrrev_b32 v{TM+4}, 5, v{LANE}
    v_lshlrev_b32 v{H16}, 4, v{TM+4}
    v_bfe_u32 v{TM+5}, v{TM+2}, 1, 3
    v_xor_b32 v{TM+5}, v{TM+5}, v{TM+4}
    v_lshlrev_b32 v{TM+5}, 4, v{TM+5}
    v_lshl_add_u32 v{TM+5}, v{TM+2}, 7, v{TM+5}
    v_add_u32 v{XR}, s{S_BUF}, v{TM+5}
    v_xor_b32 v{XR+1}, 32, v{XR}
    v_xor_b32 v{XR+2}, 64, v{XR}
    v_xor_b32 v{XR+3}, 0x60, v{XR}
    v_lshlrev_b32 v{LUTB}, 10, v{TM+4}
    s_lshl_b32 s45, s{S_W}, 11
    s_add_u32 s45, s45, {L_OH}
    v_lshl_add_u32 v{OHR}, v{TM+2}, 4, v{LUTB}
    v_add_u32 v{OHR}, s45, v{OHR}
    v_add_u32 v{LUTB}, {L_LUT}, v{LUTB}""")
    o(f"""v_bfe_u32 v{TM+5}, v{TM+2}, 2, 1
    v_lshlrev_b32 v{OHW}, 10, v{TM+5}
    v_lshrrev_b32 v{TM+5}, 4, v{TM+2}
    v_lshl_add_u32 v{OHW}, v{TM+5}, 9, v{OHW}
    v_and_b32 v{TM+5}, 8, v{TM+2}
    v_add_u32 v{OHW}, v{TM+5}, v{OHW}
    v_and_b32 v{TM+5}, 3, v{TM+2}
    v_lshl_add_u32 v{OHW}, v{TM+5}, 1, v{OHW}
    v_lshl_add_u32 v{LUTA}, v{TM+2}, 4, v{OHW}
    v_add_u32 v{LUTA}, {L_LUT}, v{LUTA}
    v_add_u32 v{OHW}, s45, v{OHW}
    v_mov_b32 v{ONE}, 0x3f80
    v_mov_b32 v{ZERO}, 0
    s_mov_b32 s{S_MASK}, 0x7fff80
    s_mov_b32 s{S_NL}, {NLOG2E:#x}
    s_mul_i32 s{S_ATB}, s2, {NCH*GS}
    s_add_u32 s{S_ATB}, s{S_ATB}, {ATTR}
    s_mov_b32 s{S_FIRST}, 1
    v_mov_b32 v{TM}, 4
    v_lshlrev_b32 v{TM+1}, 7, v0
    v_add_u32 v{TM+1}, s{S_ATB}, v{TM+1}
    v_lshrrev_b32 v{TM+2}, 3, v0
    v_mul_u32_u24 v{TM+2}, {GS-1024}, v{TM+2}
    v_add_u32 v{TM+1}, v{TM+2}, v{TM+1}
    v_mov_b32 v{TM+2}, {L_CNT}""")
    fine()
    o(f"""s_waitcnt lgkmcnt(0)
    s_barrier
    ds_write_b16 v{LUTA}, v{ONE}""")
    stamp(2)
    if O["STAMP"] & 2:
        o("s_waitcnt vmcnt(9)")
    stamp(2)
    CA, RK = HV, X
    npf = [0]

    def pf(p):
        if p < O["PFE"]:
            o(f"v_add_u32 v{TM+4}, {p*64*GS}, v{TM+1}")
            o(f"v_cmpx_ne_u32 vcc, 0, v{MR+4*p}")
            o(f"buffer_load_dword v{TM+7}, v{TM+4}, s[12:15], 0 offen")
            o("s_mov_b64 exec, -1")
            npf[0] += 1
        for c in range(4):
            i = 4 * p + c
            if i < O["PFX"]:
                o(f"v_and_b32 v{TM+5+(c&1)}, s{S_MASK}, v{MR+i}")
                o(f"buffer_load_dword v{TM+7}, v{TM+5+(c&1)}, s[8:11], 0 offen")
                npf[0] += 1

    for p in range(4):
        o(f"s_waitcnt vmcnt({9+3-p+npf[0]})")
        if O["PFPOS"] == 0:
            pf(p)
        for c in range(4):
            i = 4 * p + c
            o(f"v_and_or_b32 v{CA+i}, v{MR+i}, 28, v{TM+2}")
        for c in range(4):
            i = 4 * p + c
            o(f"v_cmpx_ne_u32 vcc, 0, v{MR+i}")
            o(f"ds_add_rtn_u32 v{RK+i}, v{CA+i}, v{TM}")
        o("s_mov_b64 exec, -1")
    if O["PFPOS"] == 1:
        for p in range(4):
            pf(p)
    if SC == 32:
        o(f"v_or_b32 v{TM+3}, v{MR+3}, v{MR+7}")
        o(f"v_or3_b32 v{TM+3}, v{TM+3}, v{MR+11}, v{MR+15}")
    else:
        o(f"v_mov_b32 v{TM+3}, 0")
        for i in range(16):
            o(f"v_or_b32 v{TM+3}, v{TM+3}, v{MR+i}")
    o(f"""v_and_b32 v{TM+3}, 1, v{TM+3}
    v_cmpx_ne_u32 vcc, 0, v{TM+3}
    ds_write_b32 v{TM+2}, v{TM+3} offset:32
    s_mov_b64 exec, -1""")
    for i in range(16):
        o(f"v_add_u32 v{CA+i}, {(i//4)*64*GS+(i%4)*32}, v{TM+1}")
    o("s_waitcnt lgkmcnt(0)")
    for p in range(4):
        for c in range(4):
            i = 4 * p + c
            o(f"v_min_u32 v{RK+i}, {L_D0+D1OFF-4}, v{RK+i}")
        for c in range(4):
            i = 4 * p + c
            o(f"v_cmpx_ne_u32 vcc, 0, v{MR+i}")
            o(f"ds_write2st64_b32 v{RK+i}, v{MR+i}, v{CA+i} offset0:0 offset1:{D1OFF//256}")
        o("s_mov_b64 exec, -1")
    stamp(2)
    o(f"""s_waitcnt vmcnt({npf[0]}) lgkmcnt(0)
    s_barrier""")
    stamp(2)

    def group(d0, d1, buf, pre=True):
        ins = []
        for s in range(4):
            ins.append(f"v_and_or_b32 v{d0+s}, v{d0+s}, s{S_MASK}, v{LP+(s&1)}")
        ins.append(f"v_or_b32 v{d1}, v{d1}, v{H16}")
        mem = []
        for s in range(4):
            m = f"s_mov_b32 m0, s{S_BUF+buf}" if s == 0 else "s_add_u32 m0, m0, 1024"
            mem.append((m, f"buffer_load_dwordx4 v{d0+s}, s[8:11], 0 offen lds{fl('K2_X')}"))
        e = f"buffer_load_dwordx4 {vr(F[buf],4)}, v{d1}, s[12:15], 0 offen{fl('K2_E')}"
        return ins, mem, e

    def emit_group(d0, d1, buf):
        ins, mem, e = group(d0, d1, buf)
        for x_ in ins:
            o(x_)
        for m, l in mem:
            o(m)
            o("s_nop 0")
            o(l)
        o(e)

    o(f"""K2_ROUND:
    v_and_b32 v{TM}, 15, v{LANE}
    v_lshlrev_b32 v{TM}, 2, v{TM}
    v_add_u32 v{TM}, {L_CNT}, v{TM}
    ds_read_b32 v{TM}, v{TM}
    s_mul_i32 s45, s{S_W}, 2560
    s_add_u32 s45, s45, {L_D0}
    v_lshrrev_b32 v{LD0}, 3, v{LANE}
    v_lshlrev_b32 v{LD0}, 4, v{LD0}
    v_add_u32 v{LD0}, s45, v{LD0}
    v_and_b32 v{LD1}, 7, v{LANE}
    v_lshlrev_b32 v{LD1}, 2, v{LD1}
    v_bfe_u32 v{TM+1}, v{LANE}, 3, 2
    v_add_u32 v{LD1}, v{LD1}, v{TM+1}
    v_lshl_add_u32 v{LD1}, v{LD1}, 2, s45
    v_lshl_add_u32 v{TM+1}, v{LANE}, 2, s45
    v_mov_b32 v{TM+2}, 0xf87fff80
    v_mov_b32 v{TM+3}, 0x7fffffe0
    v_mul_u32_u24 v{TM+4}, 2560, v{LANE}
    v_add_u32 v{TM+4}, {L_D0}, v{TM+4}
    s_waitcnt lgkmcnt(0)
    v_sub_u32 v{TM+4}, v{TM}, v{TM+4}
    v_cmp_lt_u32 vcc, {CAP*4}, v{TM+4}
    v_readlane_b32 s{S_T}, v{TM+4}, s{S_W}
    s_cmp_eq_u32 s{S_FIRST}, 0
    s_cbranch_scc1 K2_R1
    v_readlane_b32 s{S_FLAG}, v{TM}, 8
    s_mov_b32 s{S_C}, -1
    s_mov_b32 s{S_K0}, 0
    s_mov_b32 s{S_N}, 0
    s_and_b32 s46, vcc_lo, 0xff
    s_cselect_b32 s{S_R}, 0, 16
    s_cselect_b32 s{S_T}, 0, s{S_T}
    K2_R1:
    s_nop 1
    v_add_u32 v{TM+1}, s{S_T}, v{TM+1}
    ds_write2st64_b32 v{TM+1}, v{TM+2}, v{TM+3} offset0:0 offset1:{D1OFF//256}
    ds_write2st64_b32 v{TM+1}, v{TM+2}, v{TM+3} offset0:1 offset1:{D1OFF//256+1}
    ds_read_b128 {vr(D0,4)}, v{LD0}
    ds_read_b32 v{D1}, v{LD1} offset:{D1OFF}
    ds_read_b128 {vr(HV,4)}, v{LD0} offset:128
    ds_read_b32 v{HV+4}, v{LD1} offset:{D1OFF+128}
    ds_read_u8 v{LOC}, v{LD1} offset:3""")
    for s in range(4):
        o(f"ds_read_b128 {vr(X+4*s,4)}, v{XR+s} offset:4096")
    o(f"""s_add_u32 s{S_T}, s{S_T}, 127
    s_lshr_b32 s{S_T}, s{S_T}, 7
    s_waitcnt lgkmcnt(7)""")
    fine()
    emit_group(D0, D1, 0)
    o("s_waitcnt lgkmcnt(0)")
    emit_group(HV, HV + 4, 1)
    fine()
    o(f"""v_lshl_add_u32 v{LUTA}, v{LOC}, 1, v{LUTB}
    v_lshl_add_u32 v{OHA}, v{LOC}, 1, v{OHW}
    s_cmp_eq_u32 s{S_FIRST}, 0
    s_cbranch_scc1 K2_R2
    s_mov_b32 s{S_FIRST}, 0
    v_lshlrev_b32 v{TM}, 4, v{LANE}
    v_add_u32 v{TM}, {L_W}, v{TM}""")
    for f in range(8):
        o(f"ds_read_b128 {vr(WB+4*f,4)}, v{TM} offset:{f*1024}")
    for f in range(8):
        o(f"ds_read_b128 {vr(WV+4*f,4)}, v{TM} offset:{(26+f)*1024}")
    for ks in range(4):
        o(f"s_waitcnt lgkmcnt({14-2*ks})")
        for nt in range(2):
            o(mf(Z + 16 * nt, X + 4 * ks, WB + 4 * (2 * ks + nt), None if ks == 0 else Z + 16 * nt))
    for ks in range(4):
        o(f"s_waitcnt lgkmcnt({6-2*ks})")
        for nt in range(2):
            o(mf(ACC + 16 * nt, X + 4 * ks, WV + 4 * (2 * ks + nt), None if ks == 0 else ACC + 16 * nt))
    fine()
    for f in range(8):
        o(f"ds_read_b128 {vr(WB+4*f,4)}, v{TM} offset:{(8+f)*1024}")
    for f in range(2):
        o(f"ds_read_b128 {vr(WC+4*f,4)}, v{TM} offset:{(16+f)*1024}")
    for f in range(8):
        o(f"ds_read_b128 {vr(WV+4*f,4)}, v{TM} offset:{(18+f)*1024}")
    if O["PRESCALE"]:
        for i in range(32):
            o(f"v_mul_f32 v{Z+i}, s{S_NL}, v{Z+i}")
    for q in range(16):
        o(f"v_cvt_pk_bf16_f32 v{PT+q}, v{Z+2*q}, v{Z+2*q+1}")
    o("K2_R2:")
    o(f"ds_read_b128 {vr(OHT,4)}, v{LUTA}")
    o(f"ds_read_b128 {vr(OHT+4,4)}, v{LUTA} offset:512")
    o(f"ds_read_b128 {vr(D0,4)}, v{LD0} offset:256")
    o(f"ds_read_b32 v{D1}, v{LD1} offset:{D1OFF+256}")
    for i in range(16):
        o(f"v_mov_b32 v{Z+16+i}, 0")
    for i in range(8):
        o(f"v_mov_b32 v{OH+i}, 0")
    stamp(2)
    o("s_waitcnt vmcnt(5)")
    stamp(2)
    for s in range(4):
        o(f"ds_read_b128 {vr(X+4*s,4)}, v{XR+s}")
    for i in range(4):
        o(f"v_mov_b32 v{EC+i}, v{F[0]+i}")

    def zchain(nt):
        z = Z + 16 * nt
        l = [mf(z, OHT, PT + 8 * nt, None), mf(z, OHT + 4, PT + 8 * nt + 4, z), mf(z, EC, WC + 4 * nt, z)]
        l += [mf(z, X + 4 * ks, WB + 4 * (2 * ks + nt), z) for ks in range(4)]
        return l

    o("s_waitcnt lgkmcnt(0)")
    for m in zchain(0):
        o(m)
    emit_group(D0, D1, 0)
    if not O["PRESCALE"]:
        o("s_nop 4")
        for i in range(16):
            o(f"v_mul_f32 v{Z+i}, s{S_NL}, v{Z+i}")
    o(f"""s_cmp_eq_u32 s{S_T}, 0
    s_cbranch_scc1 K2_DRAIN""")

    def half(par, nt):
        zc, zn = Z + 16 * nt, Z + 16 * (1 - nt)
        accp = ACC + 16 * (1 - nt)
        ex = [f"v_exp_f32 v{zc+i}, v{zc+i}" for i in range(16)]
        rc = [f"v_rcp_f32 v{zc+i}, v{zc+i}" for i in range(16)]
        cv = [f"v_cvt_pk_bf16_f32 v{MSG+q}, v{zn+2*q}, v{zn+2*q+1}" for q in range(8)]
        hm = [mf(HV, X + 4 * ks, WV + 4 * (2 * ks + nt), None if ks == 0 else HV) for ks in range(4)]
        sm = [mf(accp, OH + 4 * t, MSG + 4 * t, accp) for t in range(2)]
        zm = zchain(1 - nt)
        nb = par ^ 1
        ab = O["ABL"]
        if "H" in ab: hm = [""] * 4
        if "B" in ab: zm = zm[:3] + [""] * 4
        if "S" in ab: sm = [""] * 2
        if "P" in ab: zm = ["", "", mf(zn, EC, WC + 4 * (1 - nt), None)] + zm[3:]
        if "X" in ab: ex = [""] * 16
        if "R" in ab: rc = [""] * 16
        if "C" in ab: cv = [""] * 8
        prio(1)
        if nt == 0:
            o(f"ds_read_u8 v{LOC}, v{LD1} offset:{(par+1)*128+3}")
        else:
            o("s_waitcnt lgkmcnt(0)")
            if O["TST"]:
                o(f"s_mov_b32 m0, s{S_T}")
                o("s_nop 3")
                o(f"v_writelane_b32 v{TM+6}, s60, m0")
                o(f"v_writelane_b32 v{TM+7}, s62, m0")
        seq = ex[0:2] + [hm[0]] + cv[0:4] + ex[2:3] + [hm[1]] + cv[4:8] + ex[3:4] + [hm[2]] + ex[4:7] + [hm[3]]
        for s_ in seq:
            o(s_)
        if nt == 1:
            o("s_waitcnt vmcnt(5)")
            for s in range(4):
                o(f"ds_read_b128 {vr(X+4*s,4)}, v{XR+s} offset:{nb*4096}")
        for s_ in ex[7:10] + [sm[0]] + ex[10:13] + [sm[1]]:
            o(s_)
        if nt == 0:
            o(f"ds_write_b16 v{OHA}, v{ONE}")
            o(f"ds_read_b128 {vr(OH,4)}, v{OHR}")
            o(f"ds_read_b128 {vr(OH+4,4)}, v{OHR} offset:512")
            o(f"ds_write_b16 v{OHA}, v{ZERO}")
        for s_ in ex[13:16]:
            o(s_)
        prio(0)
        for i in range(16):
            o(f"v_add_f32 v{zc+i}, 1.0, v{zc+i}")
        if nt == 1:
            for i in range(4):
                o(f"v_mov_b32 v{EC+i}, v{F[nb]+i}")
        prio(1)
        if nt == 0:
            o(rc[0]); o(rc[1]); o(zm[0])
            o("s_waitcnt lgkmcnt(4)")
            o(rc[2]); o(rc[3])
            o(f"v_lshl_add_u32 v{LUTA}, v{LOC}, 1, v{LUTB}")
            o(zm[1])
            o(f"ds_read_b128 {vr(OHT,4)}, v{LUTA}")
            o(f"ds_read_b128 {vr(OHT+4,4)}, v{LUTA} offset:512")
            o(rc[4]); o(rc[5]); o(zm[2])
            o(f"ds_read_b128 {vr(D0,4)}, v{LD0} offset:{(par+3)*128}")
            o(f"ds_read_b32 v{D1}, v{LD1} offset:{D1OFF+(par+3)*128}")
            o(rc[6]); o(rc[7]); o(zm[3])
            o(rc[8]); o(rc[9]); o(rc[10]); o(zm[4])
            o(rc[11]); o(rc[12]); o(rc[13]); o(zm[5])
            o(rc[14]); o(rc[15])
            if par == 1:
                o(f"v_add_u32 v{LD0}, 0x100, v{LD0}")
                o(f"v_add_u32 v{LD1}, 0x100, v{LD1}")
            o(zm[6])
        else:
            ins, mem, e = group(D0, D1, nb)
            if "M" in ab:
                mem = [("", "")] * 4
                e = ""
            o(rc[0]); o(rc[1]); o(zm[0])
            o(rc[2]); o(rc[3]); o(ins[0]); o(ins[1]); o(zm[1])
            o(rc[4]); o(rc[5]); o(ins[2]); o(ins[3]); o(zm[2])
            o(rc[6]); o(rc[7]); o(ins[4])
            o(f"v_lshl_add_u32 v{OHA}, v{LOC}, 1, v{OHW}")
            o("s_waitcnt lgkmcnt(0)")
            o(mem[0][0])
            o(zm[3])
            o(mem[0][1]); o(mem[1][0])
            o(rc[8]); o(mem[1][1]); o(mem[2][0]); o(rc[9]); o(rc[10]); o(zm[4])
            o(mem[2][1]); o(mem[3][0])
            o(rc[11]); o(mem[3][1]); o(rc[12]); o(rc[13]); o(zm[5])
            o(e)
            o(rc[14]); o(rc[15]); o(zm[6])
        prio(0)
        if O["TST"] and nt == 0:
            o("s_memrealtime s[60:61]")
            o("s_memtime s[62:63]")
        for i in range(16):
            o(f"v_mul_f32 v{zc+i}, v{zc+i}, v{HV+i}")
        if not O["PRESCALE"]:
            for i in range(16):
                o(f"v_mul_f32 v{zn+i}, s{S_NL}, v{zn+i}")

    if O["DLY"]:
        o(f"s_and_b32 s59, s{S_W if O['DLYM'] < 8 else 2}, {O['DLYM']}")
        o("s_cbranch_scc0 K2_ND")
        d = O["DLY"]
        while d > 0:
            o(f"s_sleep {min(d,127)}")
            d -= 127
        o("K2_ND:")
    if O["TST"]:
        o(f"v_mov_b32 v{TM+6}, 0")
        o(f"v_mov_b32 v{TM+7}, 0")
    o("s_nop 7")
    o("K2_LOOP:")
    for par in range(2):
        half(par, 0)
        half(par, 1)
        o(f"s_sub_u32 s{S_T}, s{S_T}, 1")
        o(f"s_cmp_eq_u32 s{S_T}, 0")
        o("s_cbranch_scc1 K2_DRAIN" if par == 0 else "s_cbranch_scc0 K2_LOOP")
    o("K2_DRAIN:")
    stamp(2)
    for q in range(8):
        o(f"v_cvt_pk_bf16_f32 v{MSG+q}, v{Z+16+2*q}, v{Z+16+2*q+1}")
    o("s_nop 1")
    for t in range(2):
        o(mf(ACC + 16, OH + 4 * t, MSG + 4 * t, ACC + 16))
    o(f"""s_cmp_lt_u32 s{S_R}, 16
    s_cbranch_scc1 K2_NEXT
    s_cmp_lg_u32 s{S_FLAG}, 0
    s_cbranch_scc1 K2_OVF
    K2_EPI:
    v_and_b32 v{TM}, 31, v{LANE}
    v_lshlrev_b32 v{TM}, 2, v{TM}
    v_lshl_add_u32 v{TM}, v{H16}, 5, v{TM}
    s_nop 7""")
    NR = 13
    regs = [(ACC + 16 * nt + i, Z + 16 * nt + i) for nt in range(2) for i in range(NR)]
    for a, t in regs:
        o(f"v_mul_f32 v{t}, s{S_NL}, v{a}")
    for a, t in regs:
        o(f"v_exp_f32 v{t}, v{t}")
    for a, t in regs:
        o(f"v_add_f32 v{t}, 1.0, v{t}")
    for a, t in regs:
        o(f"v_rcp_f32 v{t}, v{t}")
    for a, t in regs:
        o(f"v_mul_f32 v{t}, v{t}, v{a}")
    for i in range(NR):
        o(f"v_cvt_pk_bf16_f32 v{HV+i}, v{Z+i}, v{Z+16+i}")
        o(f"buffer_store_dword v{HV+i}, v{TM}, s[20:23], s{S_BASE} offen offset:{(8*(i//4)+i%4)*128}{fl('K2_O')}")
    if O["TST"]:
        o(f"""s_lshl_b32 s58, s2, 3
        s_add_u32 s58, s58, s{S_W}
        s_lshl_b32 s58, s58, 9
        s_add_u32 s58, s58, {SOFF + (1 << 20)}
        v_lshlrev_b32 v{TM+5}, 2, v{LANE}
        buffer_store_dword v{TM+6}, v{TM+5}, s[12:15], s58 offen
        buffer_store_dword v{TM+7}, v{TM+5}, s[12:15], s58 offen offset:256""")
    stamp_out(2, 12, S_W, 8, TM)
    o("""K2_END:
    s_endpgm""")
    o(f"""K2_OVF:
    s_add_u32 s{S_K0}, s{S_K0}, 512
    s_cmp_lt_u32 s{S_K0}, s{S_N}
    s_cbranch_scc1 K2_NEXT
    K2_OVS:
    s_add_u32 s{S_C}, s{S_C}, 1
    s_cmp_ge_u32 s{S_C}, {NCH}
    s_cbranch_scc1 K2_EPI
    v_add_u32 v{TM}, s{S_C}, v{LANE}
    v_lshlrev_b32 v{TM+1}, 2, v{TM}
    v_add_u32 v{TM+1}, {OVCNT}, v{TM+1}
    buffer_load_dword v{TM+1}, v{TM+1}, s[12:15], 0 offen
    v_cmp_gt_u32 vcc, {NCH}, v{TM}
    s_waitcnt vmcnt(0)
    v_cmp_ne_u32 s[46:47], 0, v{TM+1}
    s_and_b64 s[46:47], s[46:47], vcc
    s_cbranch_scc1 K2_OVG
    s_add_u32 s{S_C}, s{S_C}, 63
    s_branch K2_OVS
    K2_OVG:
    s_ff1_i32_b64 s45, s[46:47]
    s_add_u32 s{S_C}, s{S_C}, s45
    s_mov_b32 s{S_K0}, 0
    v_readlane_b32 s{S_N}, v{TM+1}, s45
    K2_NEXT:
    s_waitcnt vmcnt(0) lgkmcnt(0)
    s_barrier
    v_mov_b32 v{TM+2}, {L_CNT}
    v_lshl_add_u32 v{TM+3}, v{LANE}, 2, v{TM+2}
    v_mul_u32_u24 v{TM+4}, 2560, v{LANE}
    v_add_u32 v{TM+4}, {L_D0}, v{TM+4}
    s_mov_b64 exec, 0xff
    ds_write_b32 v{TM+3}, v{TM+4}
    s_mov_b64 exec, -1
    s_waitcnt lgkmcnt(0)
    s_barrier
    s_cmp_lt_u32 s{S_R}, 16
    s_cbranch_scc0 K2_NOV
    s_lshl_b32 s45, s{S_R}, 11
    v_lshl_add_u32 v{TM+3}, v0, 2, s45
    buffer_load_dword v{TM+4}, v{TM+3}, s[16:19], s{S_MB} offen
    v_lshl_add_u32 v{TM+6}, v{TM+3}, 3, s{S_ATB}
    v_lshrrev_b32 v{TM+5}, 7, v{TM+3}
    v_mul_u32_u24 v{TM+5}, {GS-1024}, v{TM+5}
    v_add_u32 v{TM+6}, v{TM+5}, v{TM+6}
    s_add_u32 s{S_R}, s{S_R}, 1
    s_waitcnt vmcnt(0)
    s_branch K2_BLD
    K2_NOV:
    v_add_u32 v{TM+3}, s{S_K0}, v0
    v_cmp_gt_u32 vcc, s{S_N}, v{TM+3}
    s_mul_i32 s45, s{S_C}, {CH}
    v_add_u32 v{TM+3}, s45, v{TM+3}
    v_lshlrev_b32 v{TM+6}, 3, v{TM+3}
    v_add_u32 v{TM+6}, {OVMETA}, v{TM+6}
    buffer_load_dwordx2 v[{TM+4}:{TM+5}], v{TM+6}, s[12:15], 0 offen
    v_lshlrev_b32 v{TM+6}, 5, v{TM+3}
    v_add_u32 v{TM+6}, {OVATTR}, v{TM+6}
    s_waitcnt vmcnt(0)
    v_cmp_eq_u32 s[46:47], s2, v{TM+5}
    s_and_b64 vcc, vcc, s[46:47]
    s_nop 1
    v_cndmask_b32 v{TM+4}, 0, v{TM+4}, vcc
    K2_BLD:
    v_and_or_b32 v{TM+3}, v{TM+4}, 28, v{TM+2}
    v_mov_b32 v{TM}, 4
    v_cmpx_ne_u32 vcc, 0, v{TM+4}
    ds_add_rtn_u32 v{TM+5}, v{TM+3}, v{TM}
    s_waitcnt lgkmcnt(0)
    ds_write2st64_b32 v{TM+5}, v{TM+4}, v{TM+6} offset0:0 offset1:{D1OFF//256}
    s_mov_b64 exec, -1
    s_waitcnt lgkmcnt(0)
    s_barrier
    s_branch K2_ROUND""")

    head = f"""; Edge-gated MPNN layer: kernel 1 partitions edges by destination bucket (fixed slots) and
; @launch kernel={K1} grid=({NCH+1},1,1) block=(640,1,1) lds={K1_LDS}
; @launch kernel={K2} grid=({NB},1,1) block=(512,1,1) lds={K2_LDS}
.amdgcn_target "amdgcn-amd-amdhsa--gfx950"
.text
"""

    def desc(name, vg):
        return f""".amdhsa_kernel {name}
  .amdhsa_next_free_vgpr {vg}
  .amdhsa_next_free_sgpr 102
  .amdhsa_accum_offset {vg}
  .amdhsa_group_segment_fixed_size 0
  .amdhsa_kernarg_size 80
  .amdhsa_user_sgpr_count 2
  .amdhsa_user_sgpr_kernarg_segment_ptr 1
  .amdhsa_system_sgpr_workgroup_id_x 1
  .amdhsa_float_denorm_mode_32 3
.end_amdhsa_kernel
"""
    tail = '.section .rodata,"a"\n.p2align 6\n' + desc(K1, K1_VGPR) + ".p2align 6\n" + desc(K2, 256)
    return head + o.text() + tail


if __name__ == "__main__":
    out = sys.argv[1]
    opt = {}
    for a in sys.argv[2:]:
        k, v = a.split("=", 1)
        opt[k] = int(v, 0) if isinstance(DEF[k], int) else v.replace("+", " ")
    open(out, "w").write(gen(opt))
```

```python
import sys, struct

NAME = "gather_scatter__edge_featured_mpnn_egc__graph"
N, E = 50000, 800000
NB, CH, WCH = 256, 3125, 391

DEF = dict(
    LDI="nt",
    K2_X="", K2_E="", K2_O="sc1",
    HS="sc1",
    HL="sc1",
    PRA="01",
    PRB="02",
    STAMP=0,
    XPOS=7,
    WPOS=3,
    POLLS=4096,
    TST=0,
    ABL="",
    G1POS=2,
    FORCE="",
    ISS=0,
    SW="45674567",
    NPH=4,
    OWN=1,
    EARLY=1,
    NF0=4,
    PFA=0,
    PFB=0,
    PFF="",
    XMK=0x7fff80,
    EMK=0x1ffffe0,
)


def f2u(x):
    return struct.unpack("<I", struct.pack("<f", x))[0]


NLOG2E = f2u(-1.4426950408889634)
M32 = -(-(1 << 32) * 128 // 3125)
for d in range(N):
    g = (d * M32) >> 32
    assert g == d * 128 // 3125
    b = (g * 3125 + 127) >> 7
    assert 0 <= d - b < 25


class A:
    def __init__(self):
        self.l = []

    def __call__(self, s):
        for ln in s.split("\n"):
            ln = ln.strip()
            if ln:
                self.l.append(("" if ln.endswith(":") else "    ") + ln)

    def text(self):
        return "\n".join(self.l) + "\n"


def vr(a, n):
    return f"v[{a}:{a + n - 1}]"


def srd(o, d, lo, nrec):
    o(f"s_mov_b32 s{d}, s{lo}")
    o(f"s_and_b32 s{d+1}, s{lo+1}, 0xffff")
    if nrec is not None:
        o(f"s_mov_b32 s{d+2}, {nrec}")
    o(f"s_mov_b32 s{d+3}, 0x20000")


def gen(opt):
    O = dict(DEF)
    O.update(opt)
    BS = NB * 128 + 128
    TOFF = NB * BS
    META = 4096
    KTAG = 0x9E377000
    WSB = 268435456
    fl = lambda k: (" " + O[k]) if O[k] else ""

    o = A()
    SOFF = 200 << 20
    st = [0]

    def stamp():
        if not O["STAMP"]:
            return
        o("s_memrealtime s[60:61]")
        o("s_memtime s[62:63]")
        o("s_waitcnt lgkmcnt(0)")
        o(f"s_mov_b32 s{64+2*st[0]}, s62")
        o(f"s_mov_b32 s{65+2*st[0]}, s60")
        st[0] += 1
        assert st[0] <= 15

    def stamp_out(srd_, wv, nw, t):
        if not O["STAMP"]:
            return
        o("s_waitcnt vmcnt(0)")
        stamp()
        o(f"s_mul_i32 s58, s2, {nw}")
        o(f"s_add_u32 s58, s58, s{wv}")
        o("s_lshl_b32 s58, s58, 7")
        o(f"s_add_u32 s58, s58, {SOFF}")
        o("s_waitcnt lgkmcnt(0)")
        o("s_mov_b64 exec, 1")
        o(f"v_mov_b32 v{t}, 0")
        rs = [64 + i for i in range(2 * st[0])]
        for i, r in enumerate(rs):
            o(f"v_mov_b32 v{t+1}, s{r}")
            o(f"buffer_store_dword v{t+1}, v{t}, s[{srd_}:{srd_+3}], s58 offen offset:{4*i}")
        o(f"v_mov_b32 v{t+1}, s{S_C}")
        o(f"buffer_store_dword v{t+1}, v{t}, s[{srd_}:{srd_+3}], s58 offen offset:124")
        sys.stderr.write(f"stamps: soff={SOFF} sn={st[0]} nw={nw}\n")

    K2 = NAME + "_kernel"
    SG = 696
    LS, CAPT = 4 * SG, 504
    D1OFF = 8 * LS
    D1O = D1OFF // 256
    XO = lambda b: 32768 if b == 0 else 0
    CNT1, IMG, ISTR = 32768, 33792, 272
    L_D0 = 0x10000
    L_OH = L_D0 + 2 * D1OFF
    L_LUT = L_OH + 16384
    L_CNT = L_LUT + 2048
    L_W = L_CNT + 512
    assert D1OFF % 256 == 0 and L_CNT % 256 == 0 and CAPT * 4 + 768 <= LS and LS % 16 == 0
    assert IMG + 9 * 8192 <= L_OH and (32 + 512) * 4 + 512 <= LS
    K2_LDS = L_W + 34 * 1024
    assert K2_LDS <= 163840
    XR, LP, LD0, LD1, H16, LUTB, OHW, OHR, ONE, ZERO, LOC = 1, 5, 7, 8, 9, 10, 11, 12, 13, 14, 15
    WB, WV, WC, PT, ACC, Z, HV, MSG, X, EC, OHT, OH = 16, 48, 80, 88, 104, 136, 168, 184, 192, 208, 216, 224
    D0, D1, LUTA, OHA, LANE = 232, 236, 237, 238, 239
    F = [240, 244]
    TM = 248
    FA_ = [168, 172, 176, 180, 184, 188, 208, 212]
    FU_ = [216, 220, 224, 228, 88, 92, 96, 100]
    S_W, S_T, S_MASK, S_BUF, S_TIER, S_FLAG, S_FIRST, S_C, S_K0, S_M32, S_BK, S_EM, S_NL = 3, 24, 25, 26, 28, 29, 30, 31, 32, 33, 34, 35, 36
    S_LB, S_BASE, S_SUB8, S_TAG, S_3125 = 37, 38, 39, 94, 95
    S_G6 = 100
    mf = lambda d, a, b, c: f"v_mfma_f32_32x32x16_bf16 {vr(d,16)}, {vr(a,4)}, {vr(b,4)}, " + (vr(c, 16) if c is not None else "0")
    pmap = [int(c) for c in O["PRA"]]
    prio = lambda p: o(f"s_setprio {pmap[p]}")

    q = []

    def vw(*tags):
        last = max(i for i, t in enumerate(q) if t in tags)
        return sum(1 for t in q[last + 1:] if t not in ("h", "T"))

    DST = [104, 105, 106, 108, 109, 110, 112]
    SRC = [114, 115, 116, 118, 119, 120, 122]
    G = [124 + i for i in range(7)]
    MT = lambda i: 140 + 2 * i
    RK1 = [154 + i for i in range(7)]
    BK = [161 + i for i in range(7)]
    T0, T1, V1, V127 = 131, 132, 133, 134
    RA, RC, GA, KQ = 135, 136, 137, 138
    FIL, FA, FB = 232, 236, 237
    LOQ = lambda r: 168 + 4 * r
    HIQ = lambda r: 184 + 4 * r
    CN, AC = 200, 204
    WR = 16
    WA, XA = 243, 244
    ZQ = 64

    def fill(lo, hi):
        for r in range(lo, hi):
            o(f"ds_write_b128 v{FA}, {vr(FIL,4)} offset:{8192*r}" if r < 8 else f"ds_write_b128 v{FB}, {vr(FIL,4)}")

    o(f""".globl {K2}
    .p2align 8
    .type {K2},@function
    {K2}:
    s_load_dwordx8 s[40:47], s[0:1], 0
    s_load_dwordx2 s[56:57], s[0:1], 72
    s_load_dwordx8 s[48:55], s[0:1], 32
    s_cmp_ge_u32 s2, {NB}
    s_cbranch_scc1 K2_END
    v_lshrrev_b32 v{TM}, 6, v0
    v_and_b32 v{LANE}, 63, v0
    v_readfirstlane_b32 s{S_W}, v{TM}
    v_lshlrev_b32 v{TM+1}, 4, v0
    s_lshl_b32 s58, s2, 3
    v_lshl_add_u32 v{TM+2}, v0, 1, s58
    v_and_b32 v{FIL}, 62, v{TM+2}
    v_mov_b32 v{FIL+1}, 0
    v_xor_b32 v{FIL+2}, 32, v{FIL}
    v_mov_b32 v{FIL+3}, 0
    v_add_u32 v{FA}, {IMG}, v{TM+1}""")
    fill(0, O["NF0"])
    o(f"""v_mul_u32_u24 v{TM+3}, 12, v{LANE}
    v_lshlrev_b32 v{TM+2}, 2, v{LANE}
    s_mul_i32 s58, s2, {CH*4}
    s_mul_i32 s59, s{S_W}, {WCH*4}
    s_add_u32 s58, s58, s59
    s_mov_b32 s98, {E*4}
    s_mov_b32 s99, 0x20000
    s_mov_b32 s18, {E*4}
    s_mov_b32 s19, 0x20000
    v_add_u32 v{FB}, {IMG+65536}, v{TM+1}
    v_mov_b32 v{ZQ}, 0
    v_mov_b32 v{ZQ+1}, 0
    v_mov_b32 v{ZQ+2}, 0
    v_mov_b32 v{ZQ+3}, 0
    v_lshlrev_b32 v{WA}, 4, v{LANE}
    s_waitcnt lgkmcnt(0)""")
    stamp()
    o("s_mov_b32 s96, s46")
    o("s_and_b32 s97, s47, 0xffff")

    def idx_loads(regs, sr, tag):
        o(f"buffer_load_dwordx3 {vr(regs[0],3)}, v{TM+3}, s[{sr}:{sr+3}], s58 offen{fl('LDI')}")
        o(f"buffer_load_dwordx3 {vr(regs[3],3)}, v{TM+3}, s[{sr}:{sr+3}], s58 offen offset:768{fl('LDI')}")
        o(f"buffer_load_dword v{regs[6]}, v{TM+2}, s[{sr}:{sr+3}], s58 offen offset:1536{fl('LDI')}")
        q.extend([tag + "0", tag + "1", tag + "2"])
    idx_loads(DST, 96, "D")
    o("s_mov_b32 s16, s44")
    o("s_and_b32 s17, s45, 0xffff")
    idx_loads(SRC, 16, "S")
    o(f"s_load_dword s{S_TAG}, s[56:57], 0")
    o(f"ds_write_b128 v{WA}, {vr(ZQ,4)} offset:{CNT1}")
    fill(O["NF0"], 9)
    srd(o, 8, 40, N * 128)
    srd(o, 4, 42, E * 32)
    srd(o, 12, 56, WSB)
    srd(o, 20, 54, None)
    o(f"""s_mov_b32 s40, s52
    s_and_b32 s41, s53, 0xffff
    s_movk_i32 s42, {144*128}
    s_mov_b32 s43, 0x20000
    s_lshl_b32 s{S_T}, s{S_W}, 11
    s_cmp_lt_u32 s{S_W}, 5
    s_cselect_b32 s48, s50, s48
    s_cselect_b32 s49, s51, s49
    s_cselect_b32 s56, 1, 5
    s_sub_u32 s{S_K0}, s{S_W}, s56
    s_movk_i32 s50, 8192
    s_cmp_eq_u32 s{S_W}, 0
    s_cselect_b32 s48, s52, s48
    s_cselect_b32 s49, s53, s49
    s_cselect_b32 s{S_K0}, 8, s{S_K0}
    s_cselect_b32 s50, s42, s50
    s_lshl_b32 s{S_K0}, s{S_K0}, 11
    s_and_b32 s49, s49, 0xffff
    s_mov_b32 s51, 0x20000""")

    def wts():
        o(f"""s_add_u32 m0, s{S_T}, {L_W}
        s_cmp_lg_u32 s{S_W}, 7
        buffer_load_dwordx4 v{WA}, s[40:43], s{S_T} offen lds
        buffer_load_dwordx4 v{WA}, s[40:43], s{S_T} offen offset:1024 lds
        s_add_u32 m0, s{S_T}, {L_W+16384}
        s_cmp_lg_u32 s{S_W}, 7
        buffer_load_dwordx4 v{WA}, s[48:51], s{S_K0} offen lds
        buffer_load_dwordx4 v{WA}, s[48:51], s{S_K0} offen offset:1024 lds
        s_cbranch_scc1 K2_W3
        buffer_load_dwordx4 v{WA}, s[48:51], s{S_K0} offen offset:2048 lds
        buffer_load_dwordx4 v{WA}, s[48:51], s{S_K0} offen offset:3072 lds
        K2_W3:""")
        q.extend(["W"] * 4)

    def nodebase(sub):
        o(f"""s_lshl_b32 s{S_BASE}, s{S_BK}, 3
        s_add_u32 s{S_BASE}, s{S_BASE}, s{sub}
        s_mul_i32 s{S_BASE}, s{S_BASE}, 3125
        s_add_u32 s22, s{S_BASE}, {3125+127}
        s_add_u32 s{S_BASE}, s{S_BASE}, 127
        s_and_b32 s{S_BASE}, s{S_BASE}, -128
        s_and_b32 s22, s22, -128""")

    PFV = 68

    def side(pos):
        a, b = O["PFA"] == pos, O["PFB"] == pos
        if a or b:
            if not (a and b):
                o("s_mov_b32 exec_hi, 0" if a else "s_mov_b32 exec_lo, 0")
            o(f"buffer_load_dword v{PFV+1 if pos < 5 else X+5}, v{PFV}, s[8:11], 0 offen{fl('PFF')}")
            if not (a and b):
                o("s_mov_b64 exec, -1")
            q.append("P")
        if O["WPOS"] == pos:
            wts()
        if O["XPOS"] == pos:
            o(f"s_mov_b32 m0, s{S_BUF+1}")
            o("s_nop 0")
            for s in range(4):
                o(f"buffer_load_dwordx4 v{XA+(s&1)}, s[8:11], s{S_BASE} offen offset:{s*1024} lds")
            q.extend(['X'] * 4)
    o(f"""s_mov_b32 s{S_M32}, {M32}
    s_movk_i32 s{S_3125}, 3125
    s_cmp_eq_u32 s{S_W}, 7
    s_cselect_b32 s{S_G6}, 15, 0x7f
    s_mov_b32 s{S_G6+1}, 0
    s_mul_i32 s59, s{S_W}, {WCH}
    v_mov_b32 v{V1}, 1
    v_mov_b32 v{V127}, 127
    s_mov_b32 s{S_TIER}, 0
    s_movk_i32 s52, 1342
    s_mov_b32 s54, 0x800000
    s_movk_i32 s55, {ISTR//4}
    s_waitcnt lgkmcnt(0)
    s_barrier""")
    stamp()
    o(f"""s_add_u32 s{S_TAG}, s{S_TAG}, {KTAG:#x}
    s_and_b32 s{S_TAG}, s{S_TAG}, 0xfffff000
    v_mad_u32_u24 v{MT(0)+1}, v{LANE}, 3, s59
    v_add_u32 v{MT(6)+1}, s59, v{LANE}""")
    for i in range(1, 6):
        o(f"v_add_u32 v{MT(i)+1}, {(i//3)*192+i%3}, v{MT(0)+1}")
    o(f"""v_add_u32 v{MT(6)+1}, 384, v{MT(6)+1}
    v_lshrrev_b32 v{TM+2}, 3, v0
    v_and_b32 v{TM+4}, 0x70, v{TM+1}
    v_lshlrev_b32 v{RC}, 2, v{TM+2}
    v_mul_u32_u24 v{RA}, {ISTR}, v{TM+2}
    v_add3_u32 v{RA}, v{RA}, v{TM+4}, v{FA}
    v_sub_u32 v{RA}, v{RA}, v{TM+1}
    v_mul_u32_u24 v{GA}, {BS}, v{TM+2}
    v_add_u32 v{GA}, v{GA}, v{TM+4}
    v_lshrrev_b32 v{KQ}, 3, v{TM+4}
    v_add_u32 v{KQ}, 16, v{KQ}
    s_lshl_b32 s57, s2, 7
    s_add_u32 s57, s57, {META}
    s_and_b32 s{S_BK}, s2, 7
    s_lshl_b32 s{S_BK}, s{S_BK}, 5
    s_lshr_b32 s58, s2, 3
    s_or_b32 s{S_BK}, s{S_BK}, s58""")
    if O["PFA"] or O["PFB"]:
        o(f"""v_lshrrev_b32 v{PFV}, 5, v{LANE}
        v_add_u32 v{PFV}, s2, v{PFV}
        v_and_b32 v{PFV}, 7, v{PFV}
        v_mul_u32_u24 v{PFV}, 6250, v{PFV}
        v_and_b32 v{PFV+1}, 31, v{LANE}
        v_min_u32 v{PFV+1}, 24, v{PFV+1}
        s_andn2_b32 s58, s2, 7
        s_add_u32 s58, s58, s{S_W}
        s_mul_i32 s58, s58, 25
        v_add3_u32 v{PFV}, v{PFV}, v{PFV+1}, s58
        v_lshlrev_b32 v{PFV}, 7, v{PFV}""")
    ob = L_OH - IMG - 65536
    o(f"""ds_write_b128 v{FB}, {vr(ZQ,4)} offset:{ob}
    ds_write_b128 v{FB}, {vr(ZQ,4)} offset:{ob+8192}
    s_cmp_ge_u32 s{S_W}, 2
    s_cbranch_scc1 K2_Z
    ds_write_b128 v{FB}, {vr(ZQ,4)} offset:{ob+16384}
    K2_Z:
    s_cmp_lg_u32 s{S_W}, 2
    s_cbranch_scc1 K2_Z2
    v_cmp_lt_u32 vcc, 31, v{LANE}
    v_mul_u32_u24 v{TM+5}, {SG}, v{LANE}
    v_add_u32 v{TM+5}, {L_D0-32*SG}, v{TM+5}
    v_bfrev_b32 v{TM+2}, 2
    v_cndmask_b32 v{TM+2}, v{TM+2}, v{TM+5}, vcc
    v_lshlrev_b32 v{TM+4}, 2, v{LANE}
    v_add_u32 v{TM+4}, {L_CNT}, v{TM+4}
    ds_write2st64_b32 v{TM+4}, v{TM+2}, v{TM+2} offset0:0 offset1:1
    K2_Z2:""")
    side(1)
    for i in range(7):
        if i in (0, 3, 6):
            o(f"s_waitcnt vmcnt({vw(f'D{i//3}')})")
            if i == 0:
                stamp()
        o(f"v_mul_hi_u32 v{G[i]}, v{DST[i]}, s{S_M32}")
        o(f"v_lshrrev_b32 v{BK[i]}, 1, v{G[i]}")
        o(f"v_and_b32 v{BK[i]}, 0x3fc, v{BK[i]}")
        if i == 6:
            o(f"s_mov_b64 exec, s[{S_G6}:{S_G6+1}]")
        o(f"ds_add_rtn_u32 v{RK1[i]}, v{BK[i]}, v{V1} offset:{CNT1}")
        if i == 6:
            o("s_mov_b64 exec, -1")
    side(2)
    for i in range(7):
        o(f"v_mad_u32_u24 v{T0}, v{G[i]}, s{S_3125}, v{V127}")
        o(f"v_lshrrev_b32 v{T0}, 7, v{T0}")
        o(f"v_sub_u32 v{T0}, v{DST[i]}, v{T0}")
        o(f"v_and_b32 v{T1}, 7, v{G[i]}")
        o(f"v_lshl_or_b32 v{T1}, v{T1}, 3, 64")
        o(f"v_lshl_or_b32 v{MT(i)}, v{T0}, 27, v{T1}")
        o(f"v_and_b32 v{DST[i]}, {0x700 if O['OWN'] else 0}, v{G[i]}")
        o(f"v_mul_i32_i24 v{DST[i]}, {(-(1 << 15)) & 0xffffffff:#x}, v{DST[i]}")
        o(f"v_mul_u32_u24 v{BK[i]}, s55, v{BK[i]}")

    def img_write(i):
        o(f"v_min_u32 v{G[i]}, 32, v{RK1[i]}")
        o(f"v_lshl_add_u32 v{G[i]}, v{G[i]}, 3, v{BK[i]}")
        if i == 6:
            o(f"s_mov_b64 exec, s[{S_G6}:{S_G6+1}]")
        o(f"ds_write_b64 v{G[i]}, {vr(MT(i),2)} offset:{IMG}")
        if i == 6:
            o("s_mov_b64 exec, -1")
    for i in range(7):
        w = f"vmcnt({vw(f'S{i//3}')}) " if i in (0, 3, 6) else ""
        o(f"s_waitcnt {w}lgkmcnt(6)")
        o(f"v_mad_u32_u24 v{T0}, v{SRC[i]}, s52, v{DST[i]}")
        o(f"v_lshl_or_b32 v{MT(i)}, v{SRC[i]}, 7, v{MT(i)}")
        o(f"v_lshrrev_b32 v{T0}, 23, v{T0}")
        if O["NPH"] != 4:
            o(f"v_bfi_b32 v{T0}, {4 if O['NPH'] == 2 else 0}, v{T0}, v{SRC[i]}")
        o(f"v_and_or_b32 v{MT(i)}, v{T0}, 6, v{MT(i)}")
        img_write(i)
    side(3)
    o("""K2_PASS:
    s_waitcnt lgkmcnt(0)
    s_barrier""")
    stamp()
    for r in range(4):
        o(f"ds_read_b32 v{CN+r}, v{RC} offset:{CNT1+256*r}")
        o(f"ds_read_b128 {vr(HIQ(r),4)}, v{RA} offset:{64*ISTR*r+128}")
        o(f"ds_read_b128 {vr(LOQ(r),4)}, v{RA} offset:{64*ISTR*r}")
    o(f"ds_read_b128 {vr(AC,4)}, v{WA} offset:{CNT1}")
    for r in range(4):
        lo, hi = LOQ(r), HIQ(r)
        o(f"""s_add_u32 s44, s57, {TOFF+64*BS*r}
        s_add_u32 s56, s57, {64*BS*r}
        s_waitcnt lgkmcnt({11-3*r})
        v_sub_u32 v{CN+r}, v{KQ}, v{CN+r}
        v_or_b32 v{hi+1}, s{S_TAG}, v{hi+1}
        v_cmp_gt_i32 vcc, 0, v{CN+r}
        v_add_u32 v{T0}, 16, v{CN+r}
        v_or_b32 v{hi+3}, s{S_TAG}, v{hi+3}
        v_and_or_b32 v{hi}, v{T0}, s54, v{hi}
        s_mov_b64 exec, vcc
        buffer_store_dwordx4 {vr(hi,4)}, v{GA}, s[12:15], s44 offen{fl('HS')}
        s_mov_b64 exec, -1
        s_waitcnt lgkmcnt({10-3*r})
        v_and_or_b32 v{lo}, v{CN+r}, s54, v{lo}
        v_or_b32 v{lo+1}, s{S_TAG}, v{lo+1}
        v_or_b32 v{lo+3}, s{S_TAG}, v{lo+3}
        buffer_store_dwordx4 {vr(lo,4)}, v{GA}, s[12:15], s56 offen{fl('HS')}""")
        q.extend(["h", "H"])
    o(f"""s_waitcnt lgkmcnt(0)
    v_max_u32 v{AC}, v{AC}, v{AC+1}
    v_max3_u32 v{AC}, v{AC}, v{AC+2}, v{AC+3}
    v_cmp_lt_u32 vcc, 32, v{AC}
    s_cbranch_vccnz K2_P2
    K2_P2R:""")
    stamp()
    side(4)
    nodebase(S_W)
    o(f"""v_lshrrev_b32 v{TM+2}, 4, v{LANE}
    v_xor_b32 v{TM+2}, v{TM+2}, v{LANE}
    v_and_b32 v{TM+2}, 7, v{TM+2}
    v_lshlrev_b32 v{LP}, 4, v{TM+2}
    v_xor_b32 v{LP+1}, 64, v{LP}
    v_lshrrev_b32 v{TM+3}, 3, v{LANE}
    s_lshl_b32 s{S_BUF+1}, s{S_W}, 12
    s_add_u32 s{S_BUF}, s{S_BUF+1}, 0x8000
    v_lshl_add_u32 v{XA}, v{TM+3}, 7, v{LP}
    v_lshl_add_u32 v{XA+1}, v{TM+3}, 7, v{LP+1}""")
    o(f"""v_and_b32 v{TM+2}, 31, v{LANE}
    v_lshrrev_b32 v{TM+4}, 5, v{LANE}
    v_lshlrev_b32 v{H16}, 4, v{TM+4}
    v_bfe_u32 v{TM+5}, v{TM+2}, 1, 3
    v_xor_b32 v{TM+5}, v{TM+5}, v{TM+4}
    v_lshlrev_b32 v{TM+5}, 4, v{TM+5}
    v_lshl_add_u32 v{TM+5}, v{TM+2}, 7, v{TM+5}
    v_add_u32 v{XR}, s{S_BUF+1}, v{TM+5}
    v_xor_b32 v{XR+1}, 32, v{XR}
    v_xor_b32 v{XR+2}, 64, v{XR}
    v_xor_b32 v{XR+3}, 0x60, v{XR}
    v_lshlrev_b32 v{LUTB}, 10, v{TM+4}
    s_lshl_b32 s45, s{S_W}, 11
    s_add_u32 s45, s45, {L_OH}
    v_lshl_add_u32 v{OHR}, v{TM+2}, 4, v{LUTB}
    v_add_u32 v{OHR}, s45, v{OHR}
    v_add_u32 v{LUTB}, {L_LUT}, v{LUTB}""")
    o(f"""v_bfe_u32 v{TM+5}, v{TM+2}, 2, 1
    v_lshlrev_b32 v{OHW}, 10, v{TM+5}
    v_lshrrev_b32 v{TM+5}, 4, v{TM+2}
    v_lshl_add_u32 v{OHW}, v{TM+5}, 9, v{OHW}
    v_and_b32 v{TM+5}, 8, v{TM+2}
    v_add_u32 v{OHW}, v{TM+5}, v{OHW}
    v_and_b32 v{TM+5}, 3, v{TM+2}
    v_lshl_add_u32 v{OHW}, v{TM+5}, 1, v{OHW}
    v_lshl_add_u32 v{OHA}, v{TM+2}, 4, v{OHW}
    v_add_u32 v{OHA}, {L_LUT}, v{OHA}
    v_add_u32 v{OHW}, s45, v{OHW}
    v_mov_b32 v{ONE}, 0x3f80
    v_mov_b32 v{ZERO}, 0
    ds_write_b16 v{OHA}, v{ONE}
    s_mov_b32 s{S_MASK}, {O['XMK']:#x}
    s_mov_b32 s{S_NL}, {NLOG2E:#x}
    s_mov_b32 s{S_FIRST}, 1
    s_mov_b32 s{S_EM}, {O['EMK']:#x}
    s_movk_i32 s{S_C}, {O['POLLS']}""")
    LQ = lambda j: Z + 4 * j
    TQ = lambda j: Z + 16 + 4 * j
    CA, RK = ACC, ACC + 16
    CB, LA, VA, V4, CNB = X, X + 4, X + 5, X + 6, X + 7
    KI, KJ = X + 8, X + 12
    KJA, CII, CIJ, SHV, PA, PB, PC = 56, 57, 58, 59, 60, 61, 62
    KIA, L4 = TM + 5, TM + 7
    MK = lambda j: 42 + 2 * j

    def ldparts():
        o(f"""v_lshrrev_b32 v{LD0}, 3, v{LANE}
        v_and_b32 v{LD1}, 3, v{LD0}
        v_lshlrev_b32 v{LD0}, 4, v{LD0}
        v_lshlrev_b32 v{L4}, 2, v{LANE}
        v_lshl_or_b32 v{LD1}, v{LANE}, 2, v{LD1}
        v_and_b32 v{LD1}, 31, v{LD1}
        v_lshlrev_b32 v{LD1}, 2, v{LD1}""")
    ldparts()
    ck = (1 - 8 * LS) & 0xffffffff
    o(f"""v_lshlrev_b32 v{LA}, 4, v0
    v_lshrrev_b32 v{CB}, 3, v0
    s_lshl_b32 s58, s{S_TAG}, 5
    v_mul_u32_u24 v{CB}, {CH*32}, v{CB}
    v_subrev_u32 v{CB}, s58, v{CB}
    v_mov_b32 v{V4}, 4
    v_mov_b32 v{CNB}, {L_CNT}
    v_add_u32 v{KIA}, {L_CNT+128}, v{LD0}
    v_and_b32 v{SHV}, 7, v{LANE}
    v_lshl_add_u32 v{KJA}, v{SHV}, 4, v{CNB}
    v_mul_i32_i24 v{CII}, {ck:#x}, v{TM+3}
    v_mul_i32_i24 v{CIJ}, {ck:#x}, v{SHV}
    v_lshlrev_b32 v{SHV}, 3, v{SHV}
    s_mov_b32 s56, {L_D0+D1OFF-4}
    s_movk_i32 s57, 0xfff
    s_movk_i32 s40, 127
    s_sub_u32 s41, 11, s{S_W}
    s_cmp_lt_u32 s{S_W}, 4
    s_cselect_b32 s41, s{S_W}, s41
    s_mul_i32 s50, s{S_BK}, {BS}
    s_add_u32 s50, s50, {META}""")
    for j in range(1, 4):
        o(f"v_add_u32 v{CB+j}, {64*CH*32*j}, v{CB}")
        o(f"s_add_u32 s{50+j}, s50, {8192*j}")
    if O["FORCE"] == "T":
        o(f"s_cmp_eq_u32 s2, 77")
        o(f"s_cselect_b32 s58, 0x1000, 0")
        o(f"s_xor_b32 s{S_TAG}, s{S_TAG}, s58")
    o(f"s_waitcnt vmcnt({vw('H')}) lgkmcnt(0)")
    o("s_barrier")
    stamp()

    def polls():
        for j in range(4):
            o(f"buffer_load_dwordx4 {vr(LQ(j),4)}, v{LA}, s[12:15], s{50+j} offen{fl('HL')}")
    polls()
    q.extend(["L"] * 4)
    side(5)
    o(f"""s_mov_b32 s44, 1.0
    s_cmp_ge_u32 s{S_W}, 4
    s_cselect_b32 s45, s{S_NL}, s44
    s_cmp_eq_u32 s{S_W}, 0
    s_cselect_b32 s46, s{S_NL}, s44
    s_add_u32 s47, s{S_T}, {L_W}
    v_add_u32 v{TM+1}, s47, v{WA}
    v_add_u32 v{TM}, {L_W}, v{WA}
    v_and_b32 v{TM+2}, 31, v{LANE}
    v_lshlrev_b32 v{TM+2}, 2, v{TM+2}
    v_lshl_add_u32 v{TM+2}, v{H16}, 6, v{TM+2}
    v_add_u32 v{TM+2}, s47, v{TM+2}
    v_add_u32 v{TM+3}, 0x4000, v{TM+2}""")
    o(f"s_waitcnt vmcnt({vw('W')})")

    def wread(raw, a, off):
        for j in range(4):
            o(f"ds_read2_b32 {vr(raw+2*j,2)}, v{a} offset0:{off+64*j} offset1:{off+64*j+32}")

    def wconv(raw, sc, off):
        t = 40
        for j in range(8):
            o(f"v_lshlrev_b32 v{t+j}, 16, v{raw+j}")
            o(f"v_and_b32 v{t+8+j}, 0xffff0000, v{raw+j}")
        if sc is not None:
            for j in range(16):
                o(f"v_mul_f32 v{t+j}, s{sc}, v{t+j}")
        for j in range(4):
            o(f"v_cvt_pk_bf16_f32 v{raw+j}, v{t+2*j}, v{t+2*j+1}")
            o(f"v_cvt_pk_bf16_f32 v{raw+4+j}, v{t+8+2*j}, v{t+8+2*j+1}")
        o(f"ds_write_b128 v{TM+1}, {vr(raw,4)} offset:{off}")
        o(f"ds_write_b128 v{TM+1}, {vr(raw+4,4)} offset:{off+1024}")
    wread(WR, TM + 2, 0)
    wread(WR + 8, TM + 3, 0)
    o("s_waitcnt lgkmcnt(4)")
    wconv(WR, 45, 0)
    o("s_waitcnt lgkmcnt(2)")
    wconv(WR + 8, 46, 16384)
    o(f"""s_cmp_lg_u32 s{S_W}, 7
    s_cbranch_scc1 K2_W4
    v_add_u32 v{TM+3}, 0x800, v{TM+3}""")
    wread(WR + 16, TM + 3, 0)
    o("s_waitcnt lgkmcnt(0)")
    wconv(WR + 16, None, 16384 + 2048)
    o("K2_W4:")
    o(f"s_waitcnt vmcnt({vw('L')})")
    stamp()
    o("K2_PV:")
    for j in range(4):
        o(f"v_bitop3_b32 v{CA+j}, v{LQ(j)+1}, v{LQ(j)+3}, s{S_TAG} bitop3:0x7e")
    o(f"""v_or3_b32 v{CA}, v{CA}, v{CA+1}, v{CA+2}
    v_or_b32 v{CA}, v{CA}, v{CA+3}
    v_cmp_lt_u32 vcc, s57, v{CA}
    s_cbranch_vccnz K2_PR
    s_mov_b64 exec, -1""")
    for j in range(4):
        o(f"v_cmp_lt_u32_sdwa s[{MK(j)}:{MK(j)+1}], s40, v{LQ(j)} src0_sel:DWORD src1_sel:BYTE_2")
        o(f"s_add_u32 s{50+j}, s{50+j}, {TOFF}")

    def tloads():
        for j in range(4):
            o(f"s_mov_b64 exec, s[{MK(j)}:{MK(j)+1}]")
            o(f"buffer_load_dwordx4 {vr(TQ(j),4)}, v{LA}, s[12:15], s{50+j} offen{fl('HL')}")
        o("s_mov_b64 exec, -1")
    tloads()
    q.extend(["T"] * 4)
    if O["XPOS"] == 6:
        side(6)

    def atom(m, i):
        o(f"v_bfe_u32 v{CA+i}, v{m}, 1, 6")
        o(f"v_lshl_add_u32 v{CA+i}, v{CA+i}, 2, v{CNB}")
        o(f"ds_add_rtn_u32 v{RK+i}, v{CA+i}, v{V4}")

    def wr(m, i):
        o(f"v_min_u32 v{RK+i}, s56, v{RK+i}")
        o(f"ds_write2st64_b32 v{RK+i}, v{m}, v{m+1} offset0:0 offset1:{D1O}")
    for i in range(8):
        atom(Z + 2 * i, i)
    for i in range(8):
        o(f"v_lshl_add_u32 v{Z+2*i+1}, v{Z+2*i+1}, 5, v{CB+i//2}")
    for i in range(8):
        o("s_waitcnt lgkmcnt(7)")
        wr(Z + 2 * i, i)
    o("K2_X7:")
    side(7)
    o("""s_waitcnt lgkmcnt(0)
    s_barrier""")
    stamp()

    def group(d0, d1, buf):
        ins = []
        for s in range(4):
            ins.append(f"v_and_or_b32 v{d0+s}, v{d0+s}, s{S_MASK}, v{LP+(s&1)}")
        ins.append(f"v_and_or_b32 v{d1}, v{d1}, s{S_EM}, v{H16}")
        mem = []
        for s in range(4):
            m = f"s_mov_b32 m0, s{S_BUF+buf}" if s == 0 else "s_add_u32 m0, m0, 1024"
            mem.append((m, f"buffer_load_dwordx4 v{d0+s}, s[8:11], 0 offen lds{fl('K2_X')}"))
        e = f"buffer_load_dwordx4 {vr(F[buf],4)}, v{d1}, s[4:7], 0 offen{fl('K2_E')}"
        return ins, mem, e

    def emit_group(d0, d1, buf):
        ins, mem, e = group(d0, d1, buf)
        for x_ in ins:
            o(x_)
        for m, l in mem:
            o(m)
            o("s_nop 0")
            o(l)
        o(e)

    o(f"""ds_read_b128 {vr(KI,4)}, v{KIA}
    ds_read_b128 {vr(KJ,4)}, v{KJA} offset:128
    s_or_b32 s58, s2, s{S_W}
    s_cbranch_scc0 K2_EP
    K2_EPR:
    s_waitcnt lgkmcnt(0)
    s_barrier
    v_add3_u32 v{PA}, v{KI}, v{KI+1}, v{KI+2}
    v_add3_u32 v{PB}, v{KJ}, v{KJ+1}, v{KJ+2}
    v_add_u32 v{PA}, v{PA}, v{KI+3}
    v_add_u32 v{PB}, v{PB}, v{KJ+3}
    v_lshl_add_u32 v{PA}, v{PA}, 1, v{CII}
    v_lshl_add_u32 v{PB}, v{PB}, 1, v{CIJ}
    v_cmp_gt_u32 vcc, v{PB}, v{PA}
    s_nop 1
    v_lshrrev_b64 {vr(PC,2)}, v{SHV}, vcc
    v_and_b32 v{PC}, 0xff, v{PC}
    v_bcnt_u32_b32 v{PC}, v{PC}, 0
    v_cmp_eq_u32 vcc, s41, v{PC}
    s_nop 0
    s_ff1_i32_b32 s54, vcc_lo
    s_mul_i32 s{S_LB}, s54, {LS}
    s_add_u32 s{S_LB}, s{S_LB}, {L_D0}
    v_add_u32 v{LD0}, s{S_LB}, v{LD0}
    v_add_u32 v{LD1}, s{S_LB}, v{LD1}
    ds_read_b128 {vr(D0,4)}, v{LD0}
    ds_read_b32 v{D1}, v{LD1} offset:{D1OFF}
    s_lshl_b32 s{S_SUB8}, s54, 3
    v_readlane_b32 s55, v{KI}, s{S_SUB8}""")
    if O["XPOS"] < 10:
        o(f"""s_xor_b32 s58, s54, s{S_W}
        s_lshl_b32 s58, s58, 12
        s_xor_b32 s{S_BUF}, s{S_BUF}, s58
        s_xor_b32 s{S_BUF+1}, s{S_BUF+1}, s58""")
    nodebase(54)
    side(10)
    o(f"""s_add_u32 s59, s{S_LB}, 128
    s_cmp_lt_u32 s55, s59
    s_cselect_b32 s{S_FLAG}, 1, {1 if (O['FORCE'] == 'R' or not O['EARLY']) else 0}""")
    if O["EARLY"]:
        o("s_waitcnt lgkmcnt(0)")
        emit_group(D0, D1, 0)
        q.extend(["G"] * 5)
    side(11)
    stamp()
    for f in range(8):
        o(f"ds_read_b128 {vr(FA_[f],4)}, v{TM} offset:{f*1024}")
    for f in range(8):
        o(f"ds_read_b128 {vr(FU_[f],4)}, v{TM} offset:{(26+f)*1024}")
    for f in range(8):
        o(f"ds_read_b128 {vr(WB+4*f,4)}, v{TM} offset:{(8+f)*1024}")
    for f in range(2):
        o(f"ds_read_b128 {vr(WC+4*f,4)}, v{TM} offset:{(16+f)*1024}")
    for f in range(8):
        o(f"ds_read_b128 {vr(WV+4*f,4)}, v{TM} offset:{(18+f)*1024}")
    if O["XPOS"] < 10:
        for k in range(4):
            o(f"v_xor_b32 v{XR+k}, s58, v{XR+k}")
    SA = [ACC, ACC + 1, ACC + 2]
    C32, LIM, MS, SE0, SE1 = ACC + 3, ACC + 4, ACC + 5, ACC + 6, ACC + 7
    FL, CV = ACC + 16, ACC + 17
    CD = Z
    o(f"""v_add_u32 v{SA[0]}, s{S_LB}, v{L4}
    v_add_u32 v{SA[1]}, {2*SG}, v{SA[0]}
    v_add_u32 v{SA[2]}, {3*SG}, v{SA[0]}
    v_add_u32 v{SA[0]}, {SG}, v{SA[0]}
    v_add_u32 v{C32}, v{CNB}, v{L4}
    v_mul_u32_u24 v{LIM}, {SG}, v{LANE}
    v_add_u32 v{LIM}, {L_D0-31*SG}, v{LIM}
    v_lshrrev_b32 v{MS}, 3, v{LANE}
    v_mul_u32_u24 v{MS}, {4*LS}, v{MS}
    v_add_u32 v{MS}, {4*L_D0+6*SG+4*CAPT}, v{MS}
    v_mov_b32 v{SE0}, 0xf87fff80
    v_mov_b32 v{SE1}, 0x1ffffe0""")
    o(f"s_waitcnt vmcnt({vw('T')})")
    stamp()
    o("K2_TV:")
    o(f"v_mov_b32 v{VA}, 0")
    for j in range(4):
        o(f"v_bitop3_b32 v{CA+8+j}, v{TQ(j)+1}, v{TQ(j)+3}, s{S_TAG} bitop3:0x7e")
    for j in range(4):
        o(f"v_cndmask_b32 v{CA+8+j}, 0, v{CA+8+j}, s[{MK(j)}:{MK(j)+1}]")
    o(f"""v_or3_b32 v{CA+8}, v{CA+8}, v{CA+9}, v{CA+10}
    v_or_b32 v{CA+8}, v{CA+8}, v{CA+11}
    v_cmp_lt_u32 vcc, s57, v{CA+8}
    s_cbranch_vccnz K2_TR""")
    for j in range(4):
        o(f"s_mov_b64 exec, s[{MK(j)}:{MK(j)+1}]")
        atom(TQ(j), 8 + 2 * j)
        atom(TQ(j) + 2, 9 + 2 * j)
        o(f"v_or_b32 v{VA}, v{VA}, v{TQ(j)}")
    o("s_mov_b64 exec, -1")
    for i in range(8, 16):
        o(f"v_lshl_add_u32 v{Z+2*i+1}, v{Z+2*i+1}, 5, v{CB+(i-8)//2}")
    o(f"v_cmp_lt_u32_sdwa vcc, s40, v{VA} src0_sel:DWORD src1_sel:BYTE_2")
    o("s_waitcnt lgkmcnt(0)")
    for j in range(4):
        o(f"s_mov_b64 exec, s[{MK(j)}:{MK(j)+1}]")
        wr(TQ(j), 8 + 2 * j)
        wr(TQ(j) + 2, 9 + 2 * j)
    o("s_mov_b64 exec, -1")
    o("s_cbranch_vccnz K2_TN")
    o("K2_B3:")
    if O["XPOS"] < 10:
        o(f"s_waitcnt vmcnt({vw('X')}) lgkmcnt(0)")
    else:
        o("s_waitcnt lgkmcnt(0)")
    o("s_barrier")
    stamp()
    G1 = TM
    o(f"""ds_read_b128 {vr(KI,4)}, v{KIA}
    ds_read_b32 v{CV}, v{C32}
    ds_read_b32 v{FL}, v{CNB} offset:256""")
    for p in range(3):
        for k in range(3):
            o(f"ds_read2st64_b32 {vr(CD+6*p+2*k,2)}, v{SA[p]} offset0:{k} offset1:{D1O+k}")
    o(f"""s_mov_b32 s{S_K0}, {E}
    s_add_u32 s46, s{S_LB}, {SG}
    s_add_u32 s47, s{S_LB}, {2*SG}
    s_add_u32 s48, s{S_LB}, {3*SG}
    s_waitcnt lgkmcnt(9)
    v_readlane_b32 s40, v{KI}, s{S_SUB8}
    v_readlane_b32 s41, v{KI+1}, s{S_SUB8}
    v_readlane_b32 s42, v{KI+2}, s{S_SUB8}
    v_readlane_b32 s43, v{KI+3}, s{S_SUB8}
    v_readfirstlane_b32 s49, v{FL}
    v_add3_u32 v{KI}, v{KI}, v{KI+1}, v{KI+2}
    v_cmp_lt_u32 s[50:51], v{LIM}, v{CV}
    v_add_u32 v{KI}, v{KI}, v{KI+3}
    v_cmp_lt_u32 vcc, v{MS}, v{KI}
    s_sub_u32 s44, s41, s46
    s_add_u32 s44, s44, s40
    s_sub_u32 s45, s42, s47
    s_add_u32 s45, s45, s44
    s_sub_u32 s{S_T}, s43, s48
    s_add_u32 s{S_T}, s{S_T}, s45
    v_add_u32 v{SA[0]}, s40, v{L4}
    v_add_u32 v{SA[1]}, s44, v{L4}
    v_add_u32 v{SA[2]}, s45, v{L4}
    s_cbranch_vccnz K2_FB
    s_cmp_lg_u32 s51, 0
    s_cbranch_scc1 K2_FB
    s_bitcmp0_b32 s49, 30
    s_cbranch_scc1 K2_FB
    s_waitcnt lgkmcnt(0)""")
    for p in range(3):
        for k in range(3):
            o(f"ds_write2st64_b32 v{SA[p]}, v{CD+6*p+2*k}, v{CD+6*p+2*k+1} offset0:{k} offset1:{D1O+k}")
    o(f"""K2_R1:
    v_add_u32 v{SA[0]}, s{S_T}, v{L4}
    s_sub_u32 s{S_T}, s{S_T}, s{S_LB}
    s_add_u32 s{S_T}, s{S_T}, 127
    s_lshr_b32 s{S_T}, s{S_T}, 7
    ds_write2st64_b32 v{SA[0]}, v{SE0}, v{SE1} offset0:0 offset1:{D1O}
    ds_write2st64_b32 v{SA[0]}, v{SE0}, v{SE1} offset0:1 offset1:{D1O+1}
    s_cmp_lg_u32 s{S_FLAG}, 0
    s_cbranch_scc1 K2_G0
    K2_G0R:
    ds_read_b128 {vr(G1,4)}, v{LD0} offset:128
    ds_read_b32 v{G1+4}, v{LD1} offset:{D1OFF+128}
    ds_read_u8 v{LOC}, v{LD1} offset:3""")
    if O["XPOS"] >= 10:
        o(f"s_waitcnt vmcnt({vw('X')})")
    for s in range(4):
        o(f"ds_read_b128 {vr(X+4*s,4)}, v{XR+s} offset:{XO(1)}")
    o("s_waitcnt lgkmcnt(0)")
    if O["G1POS"] == 0:
        emit_group(G1, G1 + 4, 1)
    o(f"""v_lshl_add_u32 v{LUTA}, v{LOC}, 1, v{LUTB}
    v_lshl_add_u32 v{OHA}, v{LOC}, 1, v{OHW}
    s_cmp_eq_u32 s{S_FIRST}, 0
    s_cbranch_scc1 K2_R2
    s_mov_b32 s{S_FIRST}, 0""")
    for ks in range(4):
        for nt in range(2):
            o(mf(Z + 16 * nt, X + 4 * ks, FA_[2 * ks + nt], None if ks == 0 else Z + 16 * nt))
    for ks in range(4):
        for nt in range(2):
            o(mf(ACC + 16 * nt, X + 4 * ks, FU_[2 * ks + nt], None if ks == 0 else ACC + 16 * nt))
    o("s_nop 4")
    for i in range(32):
        o(f"v_mul_f32 v{Z+i}, s{S_NL}, v{Z+i}")
    for k in range(16):
        o(f"v_cvt_pk_bf16_f32 v{PT+k}, v{Z+2*k}, v{Z+2*k+1}")
    o("K2_R2:")
    if O["G1POS"] == 2:
        emit_group(G1, G1 + 4, 1)
    o(f"ds_read_b128 {vr(OHT,4)}, v{LUTA}")
    o(f"ds_read_b128 {vr(OHT+4,4)}, v{LUTA} offset:512")
    if O["ISS"] < 2:
        o(f"ds_read_b128 {vr(D0,4)}, v{LD0} offset:256")
        o(f"ds_read_b32 v{D1}, v{LD1} offset:{D1OFF+256}")
    for i in range(16):
        o(f"v_mov_b32 v{Z+16+i}, 0")
    for i in range(8):
        o(f"v_mov_b32 v{OH+i}, 0")
    stamp()
    o("s_waitcnt vmcnt(5)")
    stamp()
    for s in range(4):
        o(f"ds_read_b128 {vr(X+4*s,4)}, v{XR+s} offset:{XO(0)}")
    for i in range(4):
        o(f"v_mov_b32 v{EC+i}, v{F[0]+i}")

    def zchain(nt):
        z = Z + 16 * nt
        l = [mf(z, OHT, PT + 8 * nt, None), mf(z, OHT + 4, PT + 8 * nt + 4, z), mf(z, EC, WC + 4 * nt, z)]
        l += [mf(z, X + 4 * ks, WB + 4 * (2 * ks + nt), z) for ks in range(4)]
        return l

    o("s_waitcnt lgkmcnt(0)")
    for m in zchain(0):
        o(m)
    if O["ISS"] == 0:
        emit_group(D0, D1, 0)
    o(f"""s_cmp_eq_u32 s{S_T}, 0
    s_cbranch_scc1 K2_DRAIN""")

    def half(par, nt):
        zc, zn = Z + 16 * nt, Z + 16 * (1 - nt)
        accp = ACC + 16 * (1 - nt)
        ex = [f"v_exp_f32 v{zc+i}, v{zc+i}" for i in range(16)]
        rc = [f"v_rcp_f32 v{zc+i}, v{zc+i}" for i in range(16)]
        cv = [f"v_cvt_pk_bf16_f32 v{MSG+k}, v{zn+2*k}, v{zn+2*k+1}" for k in range(8)]
        hm = [mf(HV, X + 4 * ks, WV + 4 * (2 * ks + nt), None if ks == 0 else HV) for ks in range(4)]
        sm = [mf(accp, OH + 4 * t, MSG + 4 * t, accp) for t in range(2)]
        zm = zchain(1 - nt)
        nb = par ^ 1
        ab = O["ABL"]
        if "H" in ab: hm = [""] * 4
        if "B" in ab: zm = zm[:3] + [""] * 4
        if "S" in ab: sm = [""] * 2
        if "P" in ab: zm = ["", "", mf(zn, EC, WC + 4 * (1 - nt), None)] + zm[3:]
        if "X" in ab: ex = [""] * 16
        if "R" in ab: rc = [""] * 16
        xrd = [f"ds_read_b128 {vr(X+4*s,4)}, v{XR+s} offset:{XO(nb)}" for s in range(4)]
        ohs = [f"ds_write_b16 v{OHA}, v{ONE}", f"ds_read_b128 {vr(OH,4)}, v{OHR}",
               f"ds_read_b128 {vr(OH+4,4)}, v{OHR} offset:512", f"ds_write_b16 v{OHA}, v{ZERO}"]
        ecs = [f"v_mov_b32 v{EC+i}, v{F[nb]+i}" for i in range(4)]
        prio(1)
        if nt == 0:
            o(f"ds_read_u8 v{LOC}, v{LD1} offset:{(par+1)*128+3}")
        else:
            o("s_waitcnt lgkmcnt(0)")
            if O["TST"]:
                o(f"s_mov_b32 m0, s{S_T}")
                o("s_nop 3")
                o(f"v_writelane_b32 v{TM+6}, s60, m0")
                o(f"v_writelane_b32 v{TM+7}, s62, m0")
        seq = ex[0:2] + [hm[0]] + cv[0:4] + ex[2:3] + [hm[1]] + cv[4:8] + ex[3:4] + [hm[2]] + ex[4:7] + [hm[3]]
        if nt == 1:
            seq += [f"s_waitcnt vmcnt({0 if O['ISS'] == 2 else 5})"] + xrd
        seq += ex[7:10] + [sm[0]] + ex[10:13] + [sm[1]]
        if nt == 0:
            seq += ohs
        seq += ex[13:16]
        for s_ in seq:
            o(s_)
        prio(0)
        for i in range(16):
            o(f"v_add_f32 v{zc+i}, 1.0, v{zc+i}")
        if nt == 1:
            for s_ in ecs:
                o(s_)
        prio(1)
        I = O["ISS"]
        dofs = (par + (2 if I == 2 else 3)) * 128
        drd = [f"ds_read_b128 {vr(D0,4)}, v{LD0} offset:{dofs}", f"ds_read_b32 v{D1}, v{LD1} offset:{D1OFF+dofs}"]
        adv = [f"v_add_u32 v{LD0}, 0x100, v{LD0}", f"v_add_u32 v{LD1}, 0x100, v{LD1}"] if par == 1 else []
        ins, mem, e = group(D0, D1, nb if I == 0 else par)
        if "M" in ab:
            mem = [("", "")] * 4
            e = ""
        if nt == 0:
            o(rc[0]); o(rc[1]); o(zm[0])
            o("s_waitcnt lgkmcnt(4)")
            o(rc[2]); o(rc[3])
            o(f"v_lshl_add_u32 v{LUTA}, v{LOC}, 1, v{LUTB}")
            o(zm[1])
            o(f"ds_read_b128 {vr(OHT,4)}, v{LUTA}")
            o(f"ds_read_b128 {vr(OHT+4,4)}, v{LUTA} offset:512")
            o(rc[4]); o(rc[5]); o(zm[2])
            o(drd[0]); o(drd[1])
            o(rc[6]); o(rc[7]); o(zm[3])
            o(rc[8]); o(rc[9]); o(rc[10]); o(zm[4])
            o(rc[11]); o(rc[12]); o(rc[13]); o(zm[5])
            o(rc[14]); o(rc[15])
            for s_ in adv:
                o(s_)
            o(zm[6])
        else:
            o(rc[0]); o(rc[1]); o(zm[0])
            o(rc[2]); o(rc[3]); o(ins[0]); o(ins[1]); o(zm[1])
            o(rc[4]); o(rc[5]); o(ins[2]); o(ins[3]); o(zm[2])
            o(rc[6]); o(rc[7]); o(ins[4])
            o(f"v_lshl_add_u32 v{OHA}, v{LOC}, 1, v{OHW}")
            o("s_waitcnt lgkmcnt(0)")
            o(mem[0][0])
            o(zm[3])
            o(mem[0][1]); o(mem[1][0])
            o(rc[8]); o(mem[1][1]); o(mem[2][0]); o(rc[9]); o(rc[10]); o(zm[4])
            o(mem[2][1]); o(mem[3][0])
            o(rc[11]); o(mem[3][1]); o(rc[12]); o(rc[13]); o(zm[5])
            o(e)
            o(rc[14]); o(rc[15]); o(zm[6])
        prio(0)
        if O["TST"] and nt == 0:
            o("s_memrealtime s[60:61]")
            o("s_memtime s[62:63]")
        for i in range(16):
            o(f"v_mul_f32 v{zc+i}, v{zc+i}, v{HV+i}")

    if O["TST"]:
        o(f"v_mov_b32 v{TM+6}, 0")
        o(f"v_mov_b32 v{TM+7}, 0")

    def loop(lab, nxt=None):
        o(f"{lab}:")
        for par in range(2):
            if par:
                o(f"{lab}_1:")
            half(par, 0)
            half(par, 1)
            o(f"s_sub_u32 s{S_T}, s{S_T}, 1")
            o(f"s_cmp_eq_u32 s{S_T}, 0")
            if nxt is None:
                o("s_cbranch_scc1 K2_DRAIN" if par == 0 else f"s_cbranch_scc0 {lab}")
            else:
                o("s_cbranch_scc1 K2_DRAIN")
                o(f"s_cmp_eq_u32 s{S_T}, s42")
                o(f"s_cselect_b32 s10, 0, s43")
                o(f"s_cselect_b32 s6, 0, s44")
                o(f"s_cmp_eq_u32 s{S_T}, s41")
                o(f"s_cbranch_scc1 {nxt}_1" if par == 0 else f"s_cbranch_scc0 {lab}")

    sw = O["SW"] if O["ISS"] == 0 else ""

    def loops(lab):
        if sw:
            loop(lab, lab + "S")
            O["ISS"] = 2
            loop(lab + "S")
            O["ISS"] = 0
        else:
            loop(lab)
    if sw:
        o(f"""s_lshl_b32 s41, s{S_W}, 2
        s_lshr_b32 s41, {int(sw[::-1], 16):#x}, s41
        s_and_b32 s41, s41, 15
        s_sub_u32 s41, s{S_T}, s41
        s_add_u32 s42, s41, 1
        s_mov_b32 s43, s10
        s_mov_b32 s44, s6
        s_nop 0""")
    else:
        o("s_nop 7")
    o(f"s_cmp_lt_u32 s{S_W}, 4")
    o("s_cbranch_scc1 K2_LOOP")
    keep = pmap[:]
    pmap[:] = [int(c) for c in O["PRB"]]
    loops("K2_LOOPB")
    o("s_branch K2_DRAIN")
    pmap[:] = keep
    loops("K2_LOOP")
    o("K2_DRAIN:")
    stamp()
    for k in range(8):
        o(f"v_cvt_pk_bf16_f32 v{MSG+k}, v{Z+16+2*k}, v{Z+16+2*k+1}")
    o("s_nop 1")
    for t in range(2):
        o(mf(ACC + 16, OH + 4 * t, MSG + 4 * t, ACC + 16))
    o(f"""s_cmp_lt_u32 s{S_K0}, {E}
    s_cbranch_scc1 K2_NEXT
    v_and_b32 v{TM}, 31, v{LANE}
    v_lshlrev_b32 v{TM}, 2, v{TM}
    v_lshl_add_u32 v{TM}, v{H16}, 5, v{TM}
    s_nop 7""")
    NR = 13

    def silu(regs):
        for a, t in regs:
            o(f"v_mul_f32 v{t}, s{S_NL}, v{a}")
        for a, t in regs:
            o(f"v_exp_f32 v{t}, v{t}")
        for a, t in regs:
            o(f"v_add_f32 v{t}, 1.0, v{t}")
        for a, t in regs:
            o(f"v_rcp_f32 v{t}, v{t}")
        for a, t in regs:
            o(f"v_mul_f32 v{t}, v{t}, v{a}")
    silu([(ACC + i, Z + i) for i in range(NR)])
    for lo, hi in ((0, 5), (5, 9), (9, 13)):
        silu([(ACC + 16 + i, Z + 16 + i) for i in range(lo, hi)])
        for i in range(lo, hi):
            o(f"v_cvt_pk_bf16_f32 v{HV+i}, v{Z+i}, v{Z+16+i}")
            o(f"buffer_store_dword v{HV+i}, v{TM}, s[20:23], s{S_BASE} offen offset:{(8*(i//4)+i%4)*128}{fl('K2_O')}")
    if O["TST"]:
        o(f"""s_lshl_b32 s58, s2, 3
        s_add_u32 s58, s58, s{S_W}
        s_lshl_b32 s58, s58, 9
        s_add_u32 s58, s58, {SOFF + (1 << 20)}
        v_lshlrev_b32 v{TM+5}, 2, v{LANE}
        buffer_store_dword v{TM+6}, v{TM+5}, s[12:15], s58 offen
        buffer_store_dword v{TM+7}, v{TM+5}, s[12:15], s58 offen offset:256""")
    stamp_out(12, S_W, 8, TM)
    o("""K2_END:
    s_endpgm""")
    def epoch(t):
        o(f"""s_mov_b64 exec, 1
        v_mov_b32 v{t}, {KTAG:#x}
        buffer_atomic_add v{t}, v{ZERO}, s[12:15], 0 offen sc1
        s_mov_b64 exec, -1""")
    o("K2_EP:")
    epoch(PA)
    o("s_branch K2_EPR")
    o(f"""K2_G0:
    ds_read_b128 {vr(D0,4)}, v{LD0}
    ds_read_b32 v{D1}, v{LD1} offset:{D1OFF}
    s_waitcnt {"vmcnt(0) " if O["XPOS"] >= 10 else ""}lgkmcnt(0)""")
    emit_group(D0, D1, 0)
    o("s_branch K2_G0R")
    o(f"""K2_P2:
    s_cmp_lg_u32 s{S_TIER}, 0
    s_mov_b32 s{S_TIER}, 0
    s_cbranch_scc1 K2_P2R
    s_mov_b32 s{S_TIER}, 1
    s_barrier""")
    fill(0, 9)
    o(f"""v_add_u32 v{KQ}, 32, v{KQ}
    s_waitcnt vmcnt(0) lgkmcnt(0)
    s_barrier""")
    for i in range(7):
        o(f"v_subrev_u32 v{RK1[i]}, 32, v{RK1[i]}")
        img_write(i)
    o(f"s_add_u32 s57, s57, {2*TOFF}")
    o("s_branch K2_PASS")
    o(f"""K2_PR:
    s_sub_u32 s{S_C}, s{S_C}, 1
    s_cbranch_scc1 K2_TO
    s_mov_b64 exec, vcc""")
    polls()
    o(f"""s_waitcnt vmcnt(0)
    s_branch K2_PV
    K2_TO:""")
    epoch(PA)
    for j in range(4):
        o(f"s_mov_b64 s[{MK(j)}:{MK(j)+1}], 0")
    o(f"ds_write_b32 v{CNB}, v{ZERO} offset:256")
    if O["XPOS"] == 6:
        side(6)
    o(f"""s_branch K2_X7
    K2_TN:
    s_add_u32 s{S_TIER}, s{S_TIER}, 1
    s_cmp_ge_u32 s{S_TIER}, 3
    s_cbranch_scc1 K2_OV""")
    for j in range(4):
        o(f"s_mov_b64 exec, s[{MK(j)}:{MK(j)+1}]")
        o(f"v_cmp_lt_u32_sdwa s[{MK(j)}:{MK(j)+1}], s40, v{TQ(j)} src0_sel:DWORD src1_sel:BYTE_2")
        o(f"s_add_u32 s{50+j}, s{50+j}, {TOFF}")
    o(f"""s_waitcnt lgkmcnt(0)
    K2_TR:
    s_sub_u32 s{S_C}, s{S_C}, 1
    s_cbranch_scc1 K2_OV""")
    tloads()
    o(f"""s_waitcnt vmcnt(0)
    s_branch K2_TV
    K2_OV:
    s_mov_b64 exec, -1
    ds_write_b32 v{CNB}, v{ZERO} offset:256
    s_branch K2_B3""")
    o(f"""K2_FB:
    s_mov_b32 s{S_K0}, 0
    s_mov_b32 s{S_T}, s{S_LB}
    s_mov_b32 s{S_FLAG}, 1
    s_branch K2_R1
    K2_NEXT:
    s_mov_b32 s10, {N*128}
    s_mov_b32 s6, {E*32}
    s_waitcnt vmcnt(0) lgkmcnt(0)
    s_barrier
    v_mov_b32 v{TM+2}, {L_CNT}
    v_lshl_add_u32 v{TM+3}, v{LANE}, 2, v{TM+2}
    v_mul_u32_u24 v{TM+4}, {SG}, v{LANE}
    v_add_u32 v{TM+4}, {L_D0-32*SG}, v{TM+4}
    ds_write_b32 v{TM+3}, v{TM+4}
    v_add_u32 v{TM+4}, {32*4}, v{TM+4}
    v_mov_b32 v{X}, 127
    v_mov_b32 v{X+1}, 4
    s_mov_b32 s45, {E}
    s_waitcnt lgkmcnt(0)
    s_barrier
    K2_SCAN:
    v_add_u32 v{TM+6}, s{S_K0}, v0
    v_lshlrev_b32 v{TM+5}, 2, v{TM+6}
    buffer_load_dword v{X+2}, v{TM+5}, s[96:99], 0 offen
    buffer_load_dword v{X+3}, v{TM+5}, s[16:19], 0 offen
    v_cmp_gt_u32 s[46:47], s45, v{TM+6}
    v_lshlrev_b32 v{TM+6}, 5, v{TM+6}
    s_add_u32 s{S_K0}, s{S_K0}, 512
    s_waitcnt vmcnt(0)
    v_mul_hi_u32 v{X+4}, v{X+2}, s{S_M32}
    v_lshrrev_b32 v{X+5}, 3, v{X+4}
    v_cmp_eq_u32 vcc, s{S_BK}, v{X+5}
    v_mad_u32_u24 v{X+5}, v{X+4}, s{S_3125}, v{X}
    v_lshrrev_b32 v{X+5}, 7, v{X+5}
    v_sub_u32 v{X+5}, v{X+2}, v{X+5}
    v_and_b32 v{X+4}, 7, v{X+4}
    v_lshl_add_u32 v{X+4}, v{X+4}, 4, v{TM+2}
    v_lshlrev_b32 v{X+5}, 27, v{X+5}
    v_lshl_or_b32 v{X+5}, v{X+3}, 7, v{X+5}
    s_and_b64 exec, vcc, s[46:47]
    ds_add_rtn_u32 v{X+4}, v{X+4}, v{X+1} offset:128
    s_waitcnt lgkmcnt(0)
    ds_write2st64_b32 v{X+4}, v{X+5}, v{TM+6} offset0:0 offset1:{D1O}
    s_mov_b64 exec, -1
    s_waitcnt lgkmcnt(0)
    s_barrier
    ds_read_b32 v{X+4}, v{TM+3}
    s_waitcnt lgkmcnt(0)
    s_barrier
    v_cmp_lt_u32 vcc, v{TM+4}, v{X+4}
    s_cmp_ge_u32 s{S_K0}, s45
    s_cbranch_scc1 K2_RN
    s_cbranch_vccz K2_SCAN
    K2_RN:
    s_lshr_b32 s46, s{S_SUB8}, 1
    s_add_u32 s46, s46, 32
    v_readlane_b32 s{S_T}, v{X+4}, s46""")
    ldparts()
    o(f"""v_add_u32 v{LD0}, s{S_LB}, v{LD0}
    v_add_u32 v{LD1}, s{S_LB}, v{LD1}
    v_add_u32 v{X}, s{S_T}, v{L4}
    v_mov_b32 v{X+1}, 0xf87fff80
    v_mov_b32 v{X+2}, 0x1ffffe0
    s_sub_u32 s{S_T}, s{S_T}, s{S_LB}
    s_add_u32 s{S_T}, s{S_T}, 127
    s_lshr_b32 s{S_T}, s{S_T}, 7
    ds_write2st64_b32 v{X}, v{X+1}, v{X+2} offset0:0 offset1:{D1O}
    ds_write2st64_b32 v{X}, v{X+1}, v{X+2} offset0:1 offset1:{D1O+1}
    s_branch K2_G0""")

    head = f"""; Edge-gated MPNN layer in one launch: every workgroup files its chunk of edges by destination
; @launch kernel={K2} grid=({NB},1,1) block=(512,1,1) lds={K2_LDS}
.amdgcn_target "amdgcn-amd-amdhsa--gfx950"
.text
"""

    def desc(name, vg):
        return f""".amdhsa_kernel {name}
  .amdhsa_next_free_vgpr {vg}
  .amdhsa_next_free_sgpr 102
  .amdhsa_accum_offset {vg}
  .amdhsa_group_segment_fixed_size 0
  .amdhsa_kernarg_size 80
  .amdhsa_user_sgpr_count 2
  .amdhsa_user_sgpr_kernarg_segment_ptr 1
  .amdhsa_system_sgpr_workgroup_id_x 1
  .amdhsa_float_denorm_mode_32 3
.end_amdhsa_kernel
"""
    tail = '.section .rodata,"a"\n.p2align 6\n' + desc(K2, 256)
    return head + o.text() + tail


if __name__ == "__main__":
    out = sys.argv[1]
    opt = {}
    for a in sys.argv[2:]:
        k, v = a.split("=", 1)
        opt[k] = int(v, 0) if isinstance(DEF[k], int) else v.replace("+", " ")
    open(out, "w").write(gen(opt))
```

```python
import sys, struct, math

NAME = "gather_scatter__edge_featured_mpnn_egc__graph"
N, E = 50000, 800000
NB, CH, WCH = 256, 3125, 391

DEF = dict(
    LDI="nt",
    K2_X="", K2_E="", K2_O="sc1",
    HS="sc1",
    HL="sc1",
    PRA="01",
    PRB="02",
    STAMP=0,
    XPOS=3,
    WPOS=3,
    POLLS=4096,
    TST=0,
    ABL="",
    G1POS=2,
    FORCE="",
    ISS=0,
    SW="23452345",
    NPH=4,
    OWN=1,
    EARLY=1,
    NF0=4,
    DELTA=0.00282,
    T1="258bef",
    EPOS="cl",
    CB=0,
    HM=1,
    XMK=0x7fff80,
    EMK=0x1ffffe0,
)


def f2u(x):
    return struct.unpack("<I", struct.pack("<f", x))[0]


NLOG2E = f2u(-1.4426950408889634)
M32 = -(-(1 << 32) * 128 // 3125)
for d in range(N):
    g = (d * M32) >> 32
    assert g == d * 128 // 3125
    b = (g * 3125 + 127) >> 7
    assert 0 <= d - b < 25


class A:
    def __init__(self):
        self.l = []

    def __call__(self, s):
        for ln in s.split("\n"):
            ln = ln.strip()
            if ln:
                self.l.append(("" if ln.endswith(":") else "    ") + ln)

    def text(self):
        return "\n".join(self.l) + "\n"


def vr(a, n):
    return f"v[{a}:{a + n - 1}]"


def srd(o, d, lo, nrec):
    o(f"s_mov_b32 s{d}, s{lo}")
    o(f"s_and_b32 s{d+1}, s{lo+1}, 0xffff")
    if nrec is not None:
        o(f"s_mov_b32 s{d+2}, {nrec}")
    o(f"s_mov_b32 s{d+3}, 0x20000")


def gen(opt):
    O = dict(DEF)
    O.update(opt)
    BS = NB * 128 + 128
    TOFF = NB * BS
    META = 4096
    KTAG = 0x9E377000
    WSB = 268435456
    fl = lambda k: (" " + O[k]) if O[k] else ""

    o = A()
    SOFF = 200 << 20
    st = [0]

    def stamp():
        if not O["STAMP"]:
            return
        o("s_memrealtime s[60:61]")
        o("s_memtime s[62:63]")
        o("s_waitcnt lgkmcnt(0)")
        o(f"s_mov_b32 s{64+2*st[0]}, s62")
        o(f"s_mov_b32 s{65+2*st[0]}, s60")
        st[0] += 1
        assert st[0] <= 15

    def stamp_out(srd_, wv, nw, t):
        if not O["STAMP"]:
            return
        o("s_waitcnt vmcnt(0)")
        stamp()
        o(f"s_mul_i32 s58, s2, {nw}")
        o(f"s_add_u32 s58, s58, s{wv}")
        o("s_lshl_b32 s58, s58, 7")
        o(f"s_add_u32 s58, s58, {SOFF}")
        o("s_waitcnt lgkmcnt(0)")
        o("s_mov_b64 exec, 1")
        o(f"v_mov_b32 v{t}, 0")
        rs = [64 + i for i in range(2 * st[0])]
        for i, r in enumerate(rs):
            o(f"v_mov_b32 v{t+1}, s{r}")
            o(f"buffer_store_dword v{t+1}, v{t}, s[{srd_}:{srd_+3}], s58 offen offset:{4*i}")
        o(f"v_mov_b32 v{t+1}, s{S_C}")
        o(f"buffer_store_dword v{t+1}, v{t}, s[{srd_}:{srd_+3}], s58 offen offset:124")
        sys.stderr.write(f"stamps: soff={SOFF} sn={st[0]} nw={nw}\n")

    K2 = NAME + "_kernel"
    SG = 696
    LS, CAPT = 4 * SG, 504
    D1OFF = 8 * LS
    D1O = D1OFF // 256
    XO = lambda b: 32768 if b == 0 else 0
    CNT1, IMG, ISTR = 32768, 33792, 272
    L_D0 = 0x10000
    L_OH = L_D0 + 2 * D1OFF
    L_LUT = L_OH + 16384
    L_CNT = L_LUT + 2048
    L_W = L_CNT + 512
    assert D1OFF % 256 == 0 and L_CNT % 256 == 0 and CAPT * 4 + 768 <= LS and LS % 16 == 0
    assert IMG + 9 * 8192 <= L_OH and (32 + 512) * 4 + 512 <= LS
    K2_LDS = L_W + 34 * 1024
    assert K2_LDS <= 163840
    XR, LP, LD0, LD1, H16, LUTB, OHW, OHR, ONE, ZERO, LOC = 1, 5, 7, 8, 9, 10, 11, 12, 13, 14, 15
    WB, WV, WC, PT, ACC, Z, HV, MSG, X, EC, OHT, OH = 16, 48, 80, 88, 104, 136, 168, 184, 192, 208, 216, 224
    D0, D1, LUTA, OHA, LANE = 232, 236, 237, 238, 239
    F = [240, 244]
    TM = 248
    S_W, S_T, S_MASK, S_BUF, S_TIER, S_FLAG, S_FIRST, S_C, S_K0, S_M32, S_BK, S_EM, S_NL = 3, 24, 25, 26, 28, 29, 30, 31, 32, 33, 34, 35, 36
    S_LB, S_BASE, S_SUB8, S_TAG, S_3125 = 37, 38, 39, 94, 95
    S_G6 = 100
    mf = lambda d, a, b, c: f"v_mfma_f32_32x32x16_bf16 {vr(d,16)}, {vr(a,4)}, {vr(b,4)}, " + (vr(c, 16) if c is not None else "0")
    sp = lambda d, a, b, ix, hi: f"v_smfmac_f32_32x32x32_bf16 {vr(d,16)}, {vr(a,4)}, {vr(b,8)}, v{ix}" + (" abid:1" if hi else "")
    SIX, S_ONE = 220, 44
    pmap = [int(c) for c in O["PRA"]]
    prio = lambda p: o(f"s_setprio {pmap[p]}")

    q = []

    def vw(*tags):
        last = max(i for i, t in enumerate(q) if t in tags)
        return sum(1 for t in q[last + 1:] if t not in ("h", "T"))

    DST = [104, 105, 106, 108, 109, 110, 112]
    SRC = [114, 115, 116, 118, 119, 120, 122]
    G = [124 + i for i in range(7)]
    MT = lambda i: 140 + 2 * i
    RK1 = [154 + i for i in range(7)]
    BK = [161 + i for i in range(7)]
    T0, T1, V1, V127 = 131, 132, 133, 134
    RA, RC, GA, KQ = 135, 136, 137, 138
    FIL, FA, FB = 232, 236, 237
    LOQ = lambda r: 168 + 4 * r
    HIQ = lambda r: 184 + 4 * r
    CN, AC = 200, 204
    WR = 16
    WA, XA = 243, 244
    ZQ = 64

    def fill(lo, hi):
        for r in range(lo, hi):
            o(f"ds_write_b128 v{FA}, {vr(FIL,4)} offset:{8192*r}" if r < 8 else f"ds_write_b128 v{FB}, {vr(FIL,4)}")

    o(f""".globl {K2}
    .p2align 8
    .type {K2},@function
    {K2}:
    s_load_dwordx8 s[40:47], s[0:1], 0
    s_load_dwordx2 s[56:57], s[0:1], 72
    s_load_dwordx8 s[48:55], s[0:1], 32
    s_cmp_ge_u32 s2, {NB}
    s_cbranch_scc1 K2_END
    v_lshrrev_b32 v{TM}, 6, v0
    v_and_b32 v{LANE}, 63, v0
    v_readfirstlane_b32 s{S_W}, v{TM}
    v_lshlrev_b32 v{TM+1}, 4, v0
    s_lshl_b32 s58, s2, 3
    v_lshl_add_u32 v{TM+2}, v0, 1, s58
    v_and_b32 v{FIL}, 62, v{TM+2}
    v_mov_b32 v{FIL+1}, 0
    v_xor_b32 v{FIL+2}, 32, v{FIL}
    v_mov_b32 v{FIL+3}, 0
    v_add_u32 v{FA}, {IMG}, v{TM+1}""")
    fill(0, O["NF0"])
    o(f"""v_mul_u32_u24 v{TM+3}, 12, v{LANE}
    v_lshlrev_b32 v{TM+2}, 2, v{LANE}
    s_mul_i32 s58, s2, {CH*4}
    s_mul_i32 s59, s{S_W}, {WCH*4}
    s_add_u32 s58, s58, s59
    s_mov_b32 s98, {E*4}
    s_mov_b32 s99, 0x20000
    s_mov_b32 s18, {E*4}
    s_mov_b32 s19, 0x20000
    v_add_u32 v{FB}, {IMG+65536}, v{TM+1}
    v_mov_b32 v{ZQ}, 0
    v_mov_b32 v{ZQ+1}, 0
    v_mov_b32 v{ZQ+2}, 0
    v_mov_b32 v{ZQ+3}, 0
    v_lshlrev_b32 v{WA}, 4, v{LANE}
    s_waitcnt lgkmcnt(0)""")
    stamp()
    o("s_mov_b32 s96, s46")
    o("s_and_b32 s97, s47, 0xffff")

    def idx_loads(regs, sr, tag):
        o(f"buffer_load_dwordx3 {vr(regs[0],3)}, v{TM+3}, s[{sr}:{sr+3}], s58 offen{fl('LDI')}")
        o(f"buffer_load_dwordx3 {vr(regs[3],3)}, v{TM+3}, s[{sr}:{sr+3}], s58 offen offset:768{fl('LDI')}")
        o(f"buffer_load_dword v{regs[6]}, v{TM+2}, s[{sr}:{sr+3}], s58 offen offset:1536{fl('LDI')}")
        q.extend([tag + "0", tag + "1", tag + "2"])
    idx_loads(DST, 96, "D")
    o("s_mov_b32 s16, s44")
    o("s_and_b32 s17, s45, 0xffff")
    idx_loads(SRC, 16, "S")
    o(f"s_load_dword s{S_TAG}, s[56:57], 0")
    o(f"ds_write_b128 v{WA}, {vr(ZQ,4)} offset:{CNT1}")
    fill(O["NF0"], 9)
    srd(o, 8, 40, N * 128)
    srd(o, 4, 42, E * 32)
    srd(o, 12, 56, WSB)
    srd(o, 20, 54, None)
    o(f"""s_mov_b32 s40, s52
    s_and_b32 s41, s53, 0xffff
    s_movk_i32 s42, {144*128}
    s_mov_b32 s43, 0x20000
    s_lshl_b32 s{S_T}, s{S_W}, 11
    s_cmp_lt_u32 s{S_W}, 5
    s_cselect_b32 s48, s50, s48
    s_cselect_b32 s49, s51, s49
    s_cselect_b32 s56, 1, 5
    s_sub_u32 s{S_K0}, s{S_W}, s56
    s_movk_i32 s50, 8192
    s_cmp_eq_u32 s{S_W}, 0
    s_cselect_b32 s48, s52, s48
    s_cselect_b32 s49, s53, s49
    s_cselect_b32 s{S_K0}, 8, s{S_K0}
    s_cselect_b32 s50, s42, s50
    s_lshl_b32 s{S_K0}, s{S_K0}, 11
    s_and_b32 s49, s49, 0xffff
    s_mov_b32 s51, 0x20000""")

    def wts():
        o(f"""s_add_u32 m0, s{S_T}, {L_W}
        s_cmp_lg_u32 s{S_W}, 7
        buffer_load_dwordx4 v{WA}, s[40:43], s{S_T} offen lds
        buffer_load_dwordx4 v{WA}, s[40:43], s{S_T} offen offset:1024 lds
        s_add_u32 m0, s{S_T}, {L_W+16384}
        s_cmp_lg_u32 s{S_W}, 7
        buffer_load_dwordx4 v{WA}, s[48:51], s{S_K0} offen lds
        buffer_load_dwordx4 v{WA}, s[48:51], s{S_K0} offen offset:1024 lds
        s_cbranch_scc1 K2_W3
        buffer_load_dwordx4 v{WA}, s[48:51], s{S_K0} offen offset:2048 lds
        buffer_load_dwordx4 v{WA}, s[48:51], s{S_K0} offen offset:3072 lds
        K2_W3:""")
        q.extend(["W"] * 4)

    def nodebase(sub):
        o(f"""s_lshl_b32 s{S_BASE}, s{S_BK}, 3
        s_add_u32 s{S_BASE}, s{S_BASE}, s{sub}
        s_mul_i32 s{S_BASE}, s{S_BASE}, 3125
        s_add_u32 s22, s{S_BASE}, {3125+127}
        s_add_u32 s{S_BASE}, s{S_BASE}, 127
        s_and_b32 s{S_BASE}, s{S_BASE}, -128
        s_and_b32 s22, s22, -128""")

    def side(pos):
        if O["WPOS"] == pos:
            wts()
        if O["XPOS"] == pos:
            o(f"s_mov_b32 m0, s{S_BUF+1}")
            o("s_nop 0")
            for s in range(4):
                o(f"buffer_load_dwordx4 v{XA+(s&1)}, s[8:11], s{S_BASE} offen offset:{s*1024} lds")
            q.extend(['X'] * 4)
    o(f"""s_mov_b32 s{S_M32}, {M32}
    s_movk_i32 s{S_3125}, 3125
    s_cmp_eq_u32 s{S_W}, 7
    s_cselect_b32 s{S_G6}, 15, 0x7f
    s_mov_b32 s{S_G6+1}, 0
    s_mul_i32 s59, s{S_W}, {WCH}
    v_mov_b32 v{V1}, 1
    v_mov_b32 v{V127}, 127
    s_mov_b32 s{S_TIER}, 0
    s_movk_i32 s52, 1342
    s_mov_b32 s54, 0x800000
    s_movk_i32 s55, {ISTR//4}
    s_waitcnt lgkmcnt(0)
    s_barrier""")
    stamp()
    o(f"""s_add_u32 s{S_TAG}, s{S_TAG}, {KTAG:#x}
    s_and_b32 s{S_TAG}, s{S_TAG}, 0xfffff000
    v_mad_u32_u24 v{MT(0)+1}, v{LANE}, 3, s59
    v_add_u32 v{MT(6)+1}, s59, v{LANE}""")
    for i in range(1, 6):
        o(f"v_add_u32 v{MT(i)+1}, {(i//3)*192+i%3}, v{MT(0)+1}")
    o(f"""v_add_u32 v{MT(6)+1}, 384, v{MT(6)+1}
    v_lshrrev_b32 v{TM+2}, 3, v0
    v_and_b32 v{TM+4}, 0x70, v{TM+1}
    v_lshlrev_b32 v{RC}, 2, v{TM+2}
    v_mul_u32_u24 v{RA}, {ISTR}, v{TM+2}
    v_add3_u32 v{RA}, v{RA}, v{TM+4}, v{FA}
    v_sub_u32 v{RA}, v{RA}, v{TM+1}
    v_mul_u32_u24 v{GA}, {BS}, v{TM+2}
    v_add_u32 v{GA}, v{GA}, v{TM+4}
    v_lshrrev_b32 v{KQ}, 3, v{TM+4}
    v_add_u32 v{KQ}, 16, v{KQ}
    s_lshl_b32 s57, s2, 7
    s_add_u32 s57, s57, {META}
    s_and_b32 s{S_BK}, s2, 7
    s_lshl_b32 s{S_BK}, s{S_BK}, 5
    s_lshr_b32 s58, s2, 3
    s_or_b32 s{S_BK}, s{S_BK}, s58""")
    nodebase(S_W)
    o(f"""v_lshrrev_b32 v{TM+2}, 4, v{LANE}
    v_xor_b32 v{TM+2}, v{TM+2}, v{LANE}
    v_and_b32 v{TM+2}, 7, v{TM+2}
    v_lshlrev_b32 v{LP}, 4, v{TM+2}
    v_xor_b32 v{LP+1}, 64, v{LP}
    v_lshrrev_b32 v{TM+3}, 3, v{LANE}
    s_lshl_b32 s{S_BUF+1}, s{S_W}, 12
    s_add_u32 s{S_BUF}, s{S_BUF+1}, 0x8000
    v_lshl_add_u32 v{XA}, v{TM+3}, 7, v{LP}
    v_lshl_add_u32 v{XA+1}, v{TM+3}, 7, v{LP+1}""")
    ob = L_OH - IMG - 65536
    o(f"""ds_write_b128 v{FB}, {vr(ZQ,4)} offset:{ob}
    ds_write_b128 v{FB}, {vr(ZQ,4)} offset:{ob+8192}
    s_cmp_ge_u32 s{S_W}, 2
    s_cbranch_scc1 K2_Z
    ds_write_b128 v{FB}, {vr(ZQ,4)} offset:{ob+16384}
    K2_Z:
    s_cmp_lg_u32 s{S_W}, 2
    s_cbranch_scc1 K2_Z2
    v_cmp_lt_u32 vcc, 31, v{LANE}
    v_mul_u32_u24 v{TM+5}, {SG}, v{LANE}
    v_add_u32 v{TM+5}, {L_D0-32*SG}, v{TM+5}
    v_bfrev_b32 v{TM+2}, 2
    v_cndmask_b32 v{TM+2}, v{TM+2}, v{TM+5}, vcc
    v_lshlrev_b32 v{TM+4}, 2, v{LANE}
    v_add_u32 v{TM+4}, {L_CNT}, v{TM+4}
    ds_write2st64_b32 v{TM+4}, v{TM+2}, v{TM+2} offset0:0 offset1:1
    K2_Z2:""")
    side(1)
    for i in range(7):
        if i in (0, 3, 6):
            o(f"s_waitcnt vmcnt({vw(f'D{i//3}')})")
            if i == 0:
                stamp()
        o(f"v_mul_hi_u32 v{G[i]}, v{DST[i]}, s{S_M32}")
        o(f"v_lshrrev_b32 v{BK[i]}, 1, v{G[i]}")
        o(f"v_and_b32 v{BK[i]}, 0x3fc, v{BK[i]}")
        if i == 6:
            o(f"s_mov_b64 exec, s[{S_G6}:{S_G6+1}]")
        o(f"ds_add_rtn_u32 v{RK1[i]}, v{BK[i]}, v{V1} offset:{CNT1}")
        if i == 6:
            o("s_mov_b64 exec, -1")
    side(2)
    for i in range(7):
        o(f"v_mad_u32_u24 v{T0}, v{G[i]}, s{S_3125}, v{V127}")
        o(f"v_lshrrev_b32 v{T0}, 7, v{T0}")
        o(f"v_sub_u32 v{T0}, v{DST[i]}, v{T0}")
        o(f"v_and_b32 v{T1}, 7, v{G[i]}")
        o(f"v_lshl_or_b32 v{T1}, v{T1}, 3, 64")
        o(f"v_lshl_or_b32 v{MT(i)}, v{T0}, 27, v{T1}")
        o(f"v_and_b32 v{DST[i]}, {0x700 if O['OWN'] else 0}, v{G[i]}")
        o(f"v_mul_i32_i24 v{DST[i]}, {(-(1 << 15)) & 0xffffffff:#x}, v{DST[i]}")
        o(f"v_mul_u32_u24 v{BK[i]}, s55, v{BK[i]}")

    def img_write(i):
        o(f"v_min_u32 v{G[i]}, 32, v{RK1[i]}")
        o(f"v_lshl_add_u32 v{G[i]}, v{G[i]}, 3, v{BK[i]}")
        if i == 6:
            o(f"s_mov_b64 exec, s[{S_G6}:{S_G6+1}]")
        o(f"ds_write_b64 v{G[i]}, {vr(MT(i),2)} offset:{IMG}")
        if i == 6:
            o("s_mov_b64 exec, -1")
    for i in range(7):
        w = f"vmcnt({vw(f'S{i//3}')}) " if i in (0, 3, 6) else ""
        o(f"s_waitcnt {w}lgkmcnt(6)")
        o(f"v_mad_u32_u24 v{T0}, v{SRC[i]}, s52, v{DST[i]}")
        o(f"v_lshl_or_b32 v{MT(i)}, v{SRC[i]}, 7, v{MT(i)}")
        o(f"v_lshrrev_b32 v{T0}, 23, v{T0}")
        if O["NPH"] != 4:
            o(f"v_bfi_b32 v{T0}, {4 if O['NPH'] == 2 else 0}, v{T0}, v{SRC[i]}")
        o(f"v_and_or_b32 v{MT(i)}, v{T0}, 6, v{MT(i)}")
        img_write(i)
    side(3)
    o("""K2_PASS:
    s_waitcnt lgkmcnt(0)
    s_barrier""")
    stamp()
    for r in range(4):
        o(f"ds_read_b32 v{CN+r}, v{RC} offset:{CNT1+256*r}")
        o(f"ds_read_b128 {vr(HIQ(r),4)}, v{RA} offset:{64*ISTR*r+128}")
        o(f"ds_read_b128 {vr(LOQ(r),4)}, v{RA} offset:{64*ISTR*r}")
    o(f"ds_read_b128 {vr(AC,4)}, v{WA} offset:{CNT1}")
    for r in range(4):
        lo, hi = LOQ(r), HIQ(r)
        o(f"""s_add_u32 s44, s57, {TOFF+64*BS*r}
        s_add_u32 s56, s57, {64*BS*r}
        s_waitcnt lgkmcnt({11-3*r})
        v_sub_u32 v{CN+r}, v{KQ}, v{CN+r}
        v_or_b32 v{hi+1}, s{S_TAG}, v{hi+1}
        {f"v_bitop3_b32 v{T1}, v{GA}, v{CN+r}, 2.0 bitop3:0xf2" if O["HM"] else f"v_cmp_gt_i32 vcc, 0, v{CN+r}"}
        v_add_u32 v{T0}, 16, v{CN+r}
        v_or_b32 v{hi+3}, s{S_TAG}, v{hi+3}
        v_and_or_b32 v{hi}, v{T0}, s54, v{hi}
        {"" if O["HM"] else "s_mov_b64 exec, vcc"}
        buffer_store_dwordx4 {vr(hi,4)}, v{T1 if O["HM"] else GA}, s[12:15], s44 offen{fl('HS')}
        {"" if O["HM"] else "s_mov_b64 exec, -1"}
        s_waitcnt lgkmcnt({10-3*r})
        v_and_or_b32 v{lo}, v{CN+r}, s54, v{lo}
        v_or_b32 v{lo+1}, s{S_TAG}, v{lo+1}
        v_or_b32 v{lo+3}, s{S_TAG}, v{lo+3}
        buffer_store_dwordx4 {vr(lo,4)}, v{GA}, s[12:15], s56 offen{fl('HS')}""")
        q.extend(["H" if O["HM"] else "h", "H"])
    o(f"""s_waitcnt lgkmcnt(0)
    v_max_u32 v{AC}, v{AC}, v{AC+1}
    v_max3_u32 v{AC}, v{AC}, v{AC+2}, v{AC+3}
    v_cmp_lt_u32 vcc, 32, v{AC}
    s_cbranch_vccnz K2_P2
    K2_P2R:""")
    stamp()
    LQ = lambda j: Z + 4 * j
    TQ = lambda j: Z + 16 + 4 * j
    CA, RK = ACC, ACC + 16
    CB, LA, VA, V4, CNB = X, X + 4, X + 5, X + 6, X + 7
    KI, KJ = X + 8, X + 12
    KJA, CII, CIJ, SHV, PA, PB, PC = 80, 81, 82, 83, 84, 85, 86
    KIA, L4, EXA = TM + 5, TM + 7, TM + 1
    MK = lambda j: 42 + 2 * j
    o(f"""v_and_b32 v{TM+2}, 31, v{LANE}
    v_lshrrev_b32 v{TM+4}, 5, v{LANE}
    s_add_u32 s47, s{S_T}, {L_W}
    v_lshlrev_b32 v{TM+6}, 2, v{TM+2}
    v_lshl_add_u32 v{TM+6}, v{TM+4}, 10, v{TM+6}
    v_add_u32 v{TM+6}, s47, v{TM+6}
    v_add_u32 v{TM+3}, 0x4000, v{TM+6}
    s_waitcnt vmcnt({vw('W')})""")

    def wread(raw, a, off):
        for j in range(4):
            o(f"ds_read2_b32 {vr(raw+2*j,2)}, v{a} offset0:{off+64*j} offset1:{off+64*j+32}")

    def wconv(raw, sc, off):
        t = 40
        for j in range(8):
            o(f"v_lshlrev_b32 v{t+j}, 16, v{raw+j}")
            o(f"v_and_b32 v{t+8+j}, 0xffff0000, v{raw+j}")
        if sc is not None:
            for j in range(16):
                o(f"v_mul_f32 v{t+j}, s{sc}, v{t+j}")
        for j in range(4):
            o(f"v_cvt_pk_bf16_f32 v{raw+j}, v{t+2*j}, v{t+2*j+1}")
            o(f"v_cvt_pk_bf16_f32 v{raw+4+j}, v{t+8+2*j}, v{t+8+2*j+1}")
        o(f"ds_write_b128 v{TM+1}, {vr(raw,4)} offset:{off}")
        o(f"ds_write_b128 v{TM+1}, {vr(raw+4,4)} offset:{off+1024}")
    wread(WR, TM + 6, 0)
    wread(WR + 8, TM + 3, 0)
    o(f"""s_mov_b32 s{S_NL}, {NLOG2E:#x}
    s_mov_b32 s44, 1.0
    s_cmp_ge_u32 s{S_W}, 4
    s_cselect_b32 s45, s{S_NL}, s44
    s_cmp_eq_u32 s{S_W}, 0
    s_cselect_b32 s46, s{S_NL}, s44
    v_add_u32 v{TM+1}, s47, v{WA}
    v_add_u32 v{TM}, {L_W}, v{WA}
    v_lshlrev_b32 v{H16}, 4, v{TM+4}
    v_bfe_u32 v{TM+5}, v{TM+2}, 1, 3
    v_xor_b32 v{TM+5}, v{TM+5}, v{TM+4}
    v_lshlrev_b32 v{TM+5}, 4, v{TM+5}
    v_lshl_add_u32 v{TM+5}, v{TM+2}, 7, v{TM+5}
    v_add_u32 v{XR}, s{S_BUF+1}, v{TM+5}
    v_xor_b32 v{XR+1}, 32, v{XR}
    v_xor_b32 v{XR+2}, 64, v{XR}
    v_xor_b32 v{XR+3}, 0x60, v{XR}
    v_lshlrev_b32 v{LA}, 4, v0
    s_mul_i32 s50, s{S_BK}, {BS}
    s_add_u32 s50, s50, {META}
    s_add_u32 s51, s50, 8192
    s_add_u32 s52, s50, 16384
    s_add_u32 s53, s50, 24576""")
    o("s_waitcnt lgkmcnt(4)")
    wconv(WR, 45, 0)
    o("s_waitcnt lgkmcnt(2)")
    wconv(WR + 8, 46, 16384)
    o(f"""s_cmp_lg_u32 s{S_W}, 7
    s_cbranch_scc1 K2_W4
    v_add_u32 v{TM+3}, 0x800, v{TM+3}""")
    wread(WR + 16, TM + 3, 0)
    o("s_waitcnt lgkmcnt(0)")
    wconv(WR + 16, None, 16384 + 2048)
    o("K2_W4:")

    def tabs():
        o(f"""v_lshlrev_b32 v{LUTB}, 10, v{TM+4}
        s_lshl_b32 s45, s{S_W}, 11
        s_add_u32 s45, s45, {L_OH}
        v_lshl_add_u32 v{OHR}, v{TM+2}, 4, v{LUTB}
        v_add_u32 v{OHR}, s45, v{OHR}
        v_add_u32 v{LUTB}, {L_LUT}, v{LUTB}
        v_bfe_u32 v{TM+5}, v{TM+2}, 3, 1
        v_lshlrev_b32 v{OHW}, 10, v{TM+5}
        v_lshrrev_b32 v{TM+4}, 4, v{TM+2}
        v_lshl_add_u32 v{OHW}, v{TM+4}, 9, v{OHW}
        v_and_b32 v{TM+6}, 7, v{TM+2}
        v_lshl_add_u32 v{OHW}, v{TM+6}, 1, v{OHW}
        v_add_u32 v{OHW}, s45, v{OHW}
        v_lshlrev_b32 v{OHA}, 10, v{TM+4}
        v_lshl_add_u32 v{OHA}, v{TM+2}, 4, v{OHA}
        v_add_u32 v{OHA}, {L_LUT}, v{OHA}
        v_and_b32 v{TM+4}, 4, v{TM+2}
        v_lshlrev_b32 v{TM+5}, 2, v{TM+5}
        v_lshl_add_u32 v{TM+5}, v{TM+4}, 1, v{TM+5}
        v_and_b32 v{TM+4}, 3, v{TM+2}
        v_lshlrev_b32 v{TM+4}, v{TM+5}, v{TM+4}
        v_add_u32 v{TM+5}, v{OHA}, v{TM+5}
        v_mov_b32 v{ONE}, 0x3f80
        ds_write_b16 v{OHA}, v{TM+4} offset:14
        ds_write_b16 v{TM+5}, v{ONE}""")
    if O["CB"] == 0:
        tabs()
    o(f"s_waitcnt vmcnt(0) lgkmcnt(0)")
    o("s_barrier")
    stamp()

    def polls():
        for j in range(4):
            o(f"buffer_load_dwordx4 {vr(LQ(j),4)}, v{LA}, s[12:15], s{50+j} offen{fl('HL')}")
    polls()
    q.extend(["L"] * 4)
    XI, FA_, FU_, ZI = Z + 16, 16, 48, [168, 208]
    for ks in range(4):
        o(f"ds_read_b128 {vr(XI+4*ks,4)}, v{XR+ks} offset:{XO(1)}")
        for nt in range(2):
            o(f"ds_read_b128 {vr(FA_+8*ks+4*nt,4)}, v{TM} offset:{(2*ks+nt)*1024}")
    for f in range(8):
        o(f"ds_read_b128 {vr(FU_+4*f,4)}, v{TM} offset:{(26+f)*1024}")

    def ldparts():
        o(f"""v_lshrrev_b32 v{LD0}, 3, v{LANE}
        v_and_b32 v{LD1}, 3, v{LD0}
        v_lshlrev_b32 v{LD0}, 4, v{LD0}
        v_lshlrev_b32 v{L4}, 2, v{LANE}
        v_lshl_or_b32 v{LD1}, v{LANE}, 2, v{LD1}
        v_and_b32 v{LD1}, 31, v{LD1}
        v_lshlrev_b32 v{LD1}, 2, v{LD1}""")
    ck = (1 - 8 * LS) & 0xffffffff
    fillers = f"""v_mov_b32 v{ZERO}, 0
    s_mov_b32 s{S_MASK}, {O['XMK']:#x}
    s_mov_b32 s{S_FIRST}, 1
    s_mov_b32 s{S_EM}, {O['EMK']:#x}
    s_movk_i32 s{S_C}, {O['POLLS']}
    v_add_u32 v{EXA}, s{S_BUF+1}, v{WA}
    v_lshrrev_b32 v{CB}, 3, v0
    s_lshl_b32 s58, s{S_TAG}, 5
    v_mul_u32_u24 v{CB}, {CH*32}, v{CB}
    v_subrev_u32 v{CB}, s58, v{CB}
    v_mov_b32 v{V4}, 4
    v_mov_b32 v{CNB}, {L_CNT}
    v_lshrrev_b32 v{CII}, 3, v{LANE}
    v_and_b32 v{SHV}, 7, v{LANE}
    v_lshl_add_u32 v{KJA}, v{SHV}, 4, v{CNB}
    v_mul_i32_i24 v{CII}, {ck:#x}, v{CII}
    v_mul_i32_i24 v{CIJ}, {ck:#x}, v{SHV}
    v_lshlrev_b32 v{SHV}, 3, v{SHV}
    s_mov_b32 s56, {L_D0+D1OFF-4}
    s_movk_i32 s57, 0xfff
    s_movk_i32 s40, 127
    s_sub_u32 s41, 11, s{S_W}
    s_cmp_lt_u32 s{S_W}, 4
    s_cselect_b32 s41, s{S_W}, s41
    v_add_u32 v{CB+1}, {64*CH*32}, v{CB}
    v_add_u32 v{CB+2}, {64*CH*32*2}, v{CB}
    v_add_u32 v{CB+3}, {64*CH*32*3}, v{CB}
    v_mov_b32 v{D1}, {f2u(-math.log2(1 + O['DELTA'])):#x}""".split("\n")
    ldparts()
    for ks in range(4):
        if ks in (0, 2):
            o(f"s_waitcnt lgkmcnt({14 if ks == 0 else 8})")
        for nt in range(2):
            o(mf(ZI[nt], XI + 4 * ks, FA_ + 8 * ks + 4 * nt, None if ks == 0 else ZI[nt]))
            for _ in range(4):
                if fillers:
                    o(fillers.pop(0))
    assert not fillers
    post = []
    for nt in range(2):
        post += [f"v_fma_f32 v{ZI[nt]+i}, v{ZI[nt]+i}, s{S_NL}, v{D1}" for i in range(16)]
        post += [f"v_cvt_pk_bf16_f32 v{PT+8*nt+k}, v{ZI[nt]+2*k}, v{ZI[nt]+2*k+1}" for k in range(8)]
        post += [f"ds_write_b128 v{EXA}, {vr(PT+8*nt+4*k,4)} offset:{2048*nt+1024*k}" for k in range(2)]
    for ks in range(4):
        if ks in (0, 2):
            o(f"s_waitcnt lgkmcnt({4 if ks == 0 else 0})")
        for nt in range(2):
            o(mf(ACC + 16 * nt, XI + 4 * ks, FU_ + 8 * ks + 4 * nt, None if ks == 0 else ACC + 16 * nt))
            if ks == 1 and nt == 1:
                o("s_nop 7")
            if ks >= 2:
                for _ in range(6):
                    o(post.pop(0))
    for p_ in post:
        o(p_)
    for nt in range(2):
        for k in range(7):
            o(f"v_cvt_pk_bf16_f32 v{ACC+16*nt+k}, v{ACC+16*nt+2*k}, v{ACC+16*nt+2*k+1}")
        for k in range(2):
            o(f"ds_write_b128 v{EXA}, {vr(ACC+16*nt+4*k,4)} offset:{32768+2048*nt+1024*k}")
    if O["CB"] == 1:
        tabs()
    o(f"v_add_u32 v{KIA}, {L_CNT+128}, v{LD0}")
    if O["FORCE"] == "T":
        o(f"s_cmp_eq_u32 s2, 77")
        o(f"s_cselect_b32 s58, 0x1000, 0")
        o(f"s_xor_b32 s{S_TAG}, s{S_TAG}, s58")
    o(f"s_waitcnt vmcnt({vw('L')})")
    stamp()
    o("K2_PV:")
    for j in range(4):
        o(f"v_bitop3_b32 v{CA+j}, v{LQ(j)+1}, v{LQ(j)+3}, s{S_TAG} bitop3:0x7e")
    o(f"""v_or3_b32 v{CA}, v{CA}, v{CA+1}, v{CA+2}
    v_or_b32 v{CA}, v{CA}, v{CA+3}
    v_cmp_lt_u32 vcc, s57, v{CA}
    s_cbranch_vccnz K2_PR
    s_mov_b64 exec, -1""")
    for j in range(4):
        o(f"v_cmp_lt_u32_sdwa s[{MK(j)}:{MK(j)+1}], s40, v{LQ(j)} src0_sel:DWORD src1_sel:BYTE_2")
        o(f"s_add_u32 s{50+j}, s{50+j}, {TOFF}")

    def tloads():
        for j in range(4):
            o(f"s_mov_b64 exec, s[{MK(j)}:{MK(j)+1}]")
            o(f"buffer_load_dwordx4 {vr(TQ(j),4)}, v{LA}, s[12:15], s{50+j} offen{fl('HL')}")
        o("s_mov_b64 exec, -1")
    tloads()
    q.extend(["T"] * 4)

    def atom(m, i):
        o(f"v_bfe_u32 v{CA+i}, v{m}, 1, 6")
        o(f"v_lshl_add_u32 v{CA+i}, v{CA+i}, 2, v{CNB}")
        o(f"ds_add_rtn_u32 v{RK+i}, v{CA+i}, v{V4}")

    def wr(m, i):
        o(f"v_min_u32 v{RK+i}, s56, v{RK+i}")
        o(f"ds_write2st64_b32 v{RK+i}, v{m}, v{m+1} offset0:0 offset1:{D1O}")
    for i in range(8):
        atom(Z + 2 * i, i)
    for i in range(8):
        o(f"v_lshl_add_u32 v{Z+2*i+1}, v{Z+2*i+1}, 5, v{CB+i//2}")
    for i in range(8):
        o("s_waitcnt lgkmcnt(7)")
        wr(Z + 2 * i, i)
    o("K2_X7:")
    o("""s_waitcnt lgkmcnt(0)
    s_barrier""")
    stamp()

    def group(d0, d1, buf, ed=None):
        ins = []
        for s in range(4):
            ins.append(f"v_and_or_b32 v{d0+s}, v{d0+s}, s{S_MASK}, v{LP+(s&1)}")
        ins.append(f"v_and_or_b32 v{d1}, v{d1}, s{S_EM}, v{H16}")
        mem = []
        for s in range(4):
            m = f"s_mov_b32 m0, s{S_BUF+buf}" if s == 0 else "s_add_u32 m0, m0, 1024"
            mem.append((m, f"buffer_load_dwordx4 v{d0+s}, s[8:11], 0 offen lds{fl('K2_X')}"))
        e = f"buffer_load_dwordx4 {vr(F[buf] if ed is None else ed,4)}, v{d1}, s[4:7], 0 offen{fl('K2_E')}"
        return ins, mem, e

    def emit_group(d0, d1, buf, withe=True, ed=None, wait=""):
        ins, mem, e = group(d0, d1, buf, ed)
        for x_ in ins[:5 if withe else 4]:
            o(x_)
        o(wait)
        for m, l in mem:
            o(m)
            o("s_nop 0")
            o(l)
        if withe:
            o(e)

    o(f"""ds_read_b128 {vr(KI,4)}, v{KIA}
    ds_read_b128 {vr(KJ,4)}, v{KJA} offset:128
    s_or_b32 s58, s2, s{S_W}
    s_cbranch_scc0 K2_EP
    K2_EPR:
    s_waitcnt lgkmcnt(0)
    s_barrier
    v_add3_u32 v{PA}, v{KI}, v{KI+1}, v{KI+2}
    v_add3_u32 v{PB}, v{KJ}, v{KJ+1}, v{KJ+2}
    v_add_u32 v{PA}, v{PA}, v{KI+3}
    v_add_u32 v{PB}, v{PB}, v{KJ+3}
    v_lshl_add_u32 v{PA}, v{PA}, 1, v{CII}
    v_lshl_add_u32 v{PB}, v{PB}, 1, v{CIJ}
    v_cmp_gt_u32 vcc, v{PB}, v{PA}
    s_nop 1
    v_lshrrev_b64 {vr(PC,2)}, v{SHV}, vcc
    v_and_b32 v{PC}, 0xff, v{PC}
    v_bcnt_u32_b32 v{PC}, v{PC}, 0
    v_cmp_eq_u32 vcc, s41, v{PC}
    s_nop 0
    s_ff1_i32_b32 s54, vcc_lo
    s_mul_i32 s{S_LB}, s54, {LS}
    s_add_u32 s{S_LB}, s{S_LB}, {L_D0}
    v_add_u32 v{LD0}, s{S_LB}, v{LD0}
    v_add_u32 v{LD1}, s{S_LB}, v{LD1}
    ds_read_b128 {vr(D0,4)}, v{LD0}
    ds_read_b32 v{D1}, v{LD1} offset:{D1OFF}
s_xor_b32 s58, s54, s{S_W}
    s_lshl_b32 s58, s58, 12
    v_xor_b32 v{EXA}, s58, v{EXA}
    s_lshl_b32 s{S_SUB8}, s54, 3""")
    AP = 168
    for k in range(4):
        o(f"ds_read_b128 {vr(AP+4*k,4)}, v{EXA} offset:{32768+1024*k}")
    o(f"""v_readlane_b32 s55, v{KI}, s{S_SUB8}
    s_xor_b32 s{S_BUF}, s{S_BUF}, s58
    s_xor_b32 s{S_BUF+1}, s{S_BUF+1}, s58""")
    nodebase(54)
    o(f"""s_add_u32 s59, s{S_LB}, 128
    s_cmp_lt_u32 s55, s59
    s_cselect_b32 s{S_FLAG}, 1, {1 if (O['FORCE'] == 'R' or not O['EARLY']) else 0}""")
    if O["EARLY"]:
        o("s_waitcnt lgkmcnt(4)")
        emit_group(D0, D1, 0, wait="s_waitcnt lgkmcnt(0)")
        q.extend(["G"] * 5)
    stamp()
    for k in range(4):
        o(f"ds_read_b128 {vr(PT+4*k,4)}, v{EXA} offset:{1024*k}")

    def wfr():
        for f in range(2):
            o(f"ds_read_b128 {vr(WC+4*f,4)}, v{TM} offset:{(16+f)*1024}")
        for f in range(8):
            o(f"ds_read_b128 {vr(WB+4*f,4)}, v{TM} offset:{(8+f)*1024}")
        for f in range(8):
            o(f"ds_read_b128 {vr(WV+4*f,4)}, v{TM} offset:{(18+f)*1024}")
    wfr()
    for k in range(4):
        o(f"v_xor_b32 v{XR+k}, s58, v{XR+k}")
    SA = [ACC, ACC + 1, ACC + 2]
    C32, LIM, MS, SE0, SE1 = ACC + 3, ACC + 4, ACC + 5, ACC + 6, ACC + 7
    FL, CV = ACC + 16, ACC + 17
    CD = Z
    o(f"""v_add_u32 v{SA[0]}, s{S_LB}, v{L4}
    v_add_u32 v{SA[1]}, {2*SG}, v{SA[0]}
    v_add_u32 v{SA[2]}, {3*SG}, v{SA[0]}
    v_add_u32 v{SA[0]}, {SG}, v{SA[0]}
    v_add_u32 v{C32}, v{CNB}, v{L4}
    v_mul_u32_u24 v{LIM}, {SG}, v{LANE}
    v_add_u32 v{LIM}, {L_D0-31*SG}, v{LIM}
    v_lshrrev_b32 v{MS}, 3, v{LANE}
    v_mul_u32_u24 v{MS}, {4*LS}, v{MS}
    v_add_u32 v{MS}, {4*L_D0+6*SG+4*CAPT}, v{MS}
    v_mov_b32 v{SE0}, 0xf87fff80
    v_mov_b32 v{SE1}, 0x1ffffe0""")
    o(f"s_waitcnt vmcnt({vw('T')})")
    stamp()
    o("K2_TV:")
    o(f"v_mov_b32 v{VA}, 0")
    for j in range(4):
        o(f"v_bitop3_b32 v{CA+8+j}, v{TQ(j)+1}, v{TQ(j)+3}, s{S_TAG} bitop3:0x7e")
    for j in range(4):
        o(f"v_cndmask_b32 v{CA+8+j}, 0, v{CA+8+j}, s[{MK(j)}:{MK(j)+1}]")
    o(f"""v_or3_b32 v{CA+8}, v{CA+8}, v{CA+9}, v{CA+10}
    v_or_b32 v{CA+8}, v{CA+8}, v{CA+11}
    v_cmp_lt_u32 vcc, s57, v{CA+8}
    s_cbranch_vccnz K2_TR""")
    for j in range(4):
        o(f"s_mov_b64 exec, s[{MK(j)}:{MK(j)+1}]")
        atom(TQ(j), 8 + 2 * j)
        atom(TQ(j) + 2, 9 + 2 * j)
        o(f"v_or_b32 v{VA}, v{VA}, v{TQ(j)}")
    o("s_mov_b64 exec, -1")
    for i in range(8, 16):
        o(f"v_lshl_add_u32 v{Z+2*i+1}, v{Z+2*i+1}, 5, v{CB+(i-8)//2}")
    o(f"v_cmp_lt_u32_sdwa vcc, s40, v{VA} src0_sel:DWORD src1_sel:BYTE_2")
    o("s_waitcnt lgkmcnt(0)")
    for j in range(4):
        o(f"s_mov_b64 exec, s[{MK(j)}:{MK(j)+1}]")
        wr(TQ(j), 8 + 2 * j)
        wr(TQ(j) + 2, 9 + 2 * j)
    o("s_mov_b64 exec, -1")
    o("s_cbranch_vccnz K2_TN")
    o("K2_B3:")
    o("s_waitcnt lgkmcnt(0)")
    o("s_barrier")
    stamp()
    G1 = TM
    o(f"""ds_read_b128 {vr(KI,4)}, v{KIA}
    ds_read_b32 v{CV}, v{C32}
    ds_read_b32 v{FL}, v{CNB} offset:256""")
    for p in range(3):
        for k in range(3):
            o(f"ds_read2st64_b32 {vr(CD+6*p+2*k,2)}, v{SA[p]} offset0:{k} offset1:{D1O+k}")
    o(f"""s_mov_b32 s{S_K0}, {E}
    s_add_u32 s46, s{S_LB}, {SG}
    s_add_u32 s47, s{S_LB}, {2*SG}
    s_add_u32 s48, s{S_LB}, {3*SG}
    s_waitcnt lgkmcnt(9)
    v_readlane_b32 s40, v{KI}, s{S_SUB8}
    v_readlane_b32 s41, v{KI+1}, s{S_SUB8}
    v_readlane_b32 s42, v{KI+2}, s{S_SUB8}
    v_readlane_b32 s43, v{KI+3}, s{S_SUB8}
    v_readfirstlane_b32 s49, v{FL}
    v_add3_u32 v{KI}, v{KI}, v{KI+1}, v{KI+2}
    v_cmp_lt_u32 s[50:51], v{LIM}, v{CV}
    v_add_u32 v{KI}, v{KI}, v{KI+3}
    v_cmp_lt_u32 vcc, v{MS}, v{KI}
    s_sub_u32 s44, s41, s46
    s_add_u32 s44, s44, s40
    s_sub_u32 s45, s42, s47
    s_add_u32 s45, s45, s44
    s_sub_u32 s{S_T}, s43, s48
    s_add_u32 s{S_T}, s{S_T}, s45
    v_add_u32 v{SA[0]}, s40, v{L4}
    v_add_u32 v{SA[1]}, s44, v{L4}
    v_add_u32 v{SA[2]}, s45, v{L4}
    s_cbranch_vccnz K2_FB
    s_cmp_lg_u32 s51, 0
    s_cbranch_scc1 K2_FB
    s_bitcmp0_b32 s49, 30
    s_cbranch_scc1 K2_FB
    s_waitcnt lgkmcnt(0)""")
    for p in range(3):
        for k in range(3):
            o(f"ds_write2st64_b32 v{SA[p]}, v{CD+6*p+2*k}, v{CD+6*p+2*k+1} offset0:{k} offset1:{D1O+k}")
    o(f"""K2_R1:
    v_add_u32 v{SA[0]}, s{S_T}, v{L4}
    s_sub_u32 s{S_T}, s{S_T}, s{S_LB}
    s_add_u32 s{S_T}, s{S_T}, 127
    s_lshr_b32 s{S_T}, s{S_T}, 7
    ds_write2st64_b32 v{SA[0]}, v{SE0}, v{SE1} offset0:0 offset1:{D1O}
    ds_write2st64_b32 v{SA[0]}, v{SE0}, v{SE1} offset0:1 offset1:{D1O+1}
    s_cmp_lg_u32 s{S_FLAG}, 0
    s_cbranch_scc1 K2_G0
    K2_G0R:
    ds_read_b128 {vr(G1,4)}, v{LD0} offset:128
    ds_read_b32 v{G1+4}, v{LD1} offset:{D1OFF+128}
    ds_read_u8 v{LOC}, v{LD1} offset:3""")
    g1 = lambda: emit_group(G1, G1 + 4, 1, True, 188 if O["EPOS"][0] == "c" and O["ISS"] < 2 else None)
    if O["G1POS"] == 0:
        o("s_waitcnt lgkmcnt(0)")
        g1()
    o(f"""s_cmp_eq_u32 s{S_FIRST}, 0
    s_cbranch_scc1 K2_R2
    s_mov_b32 s{S_FIRST}, 0""")
    for nt in range(2):
        for k in range(7):
            o(f"v_lshlrev_b32 v{ACC+16*nt+2*k}, 16, v{AP+8*nt+k}")
            o(f"v_and_b32 v{ACC+16*nt+2*k+1}, 0xffff0000, v{AP+8*nt+k}")
    o(f"""K2_R2:
    s_waitcnt lgkmcnt(0)
    v_lshl_add_u32 v{LUTA}, v{LOC}, 1, v{LUTB}
    v_lshl_add_u32 v{OHA}, v{LOC}, 1, v{OHW}""")
    if O["G1POS"] == 2:
        g1()
    o(f"ds_read_b128 {vr(OHT,4)}, v{LUTA}")
    CP = O["EPOS"][0] == "c" and O["ISS"] < 2
    GL = [184, 188]
    if O["ISS"] < 2:
        o(f"ds_read_b128 {vr(D0,4)}, v{LD0} offset:256")
    if CP:
        o(f"ds_read_b32 v{D1}, v{LD1} offset:{D1OFF+256}")
    o(f"v_mov_b32 v{SIX}, 0xdddd")
    o(f"s_mov_b32 s{S_ONE}, {f2u(1 / (1 + O['DELTA'])):#x}")
    for i in range(16):
        o(f"v_mov_b32 v{Z+16+i}, 0")
    for i in range(8):
        o(f"v_mov_b32 v{OH+i}, 0")
    stamp()
    o(f"s_waitcnt vmcnt({0 if O['G1POS'] == 3 else 5})")
    stamp()
    for s in range(4):
        o(f"ds_read_b128 {vr(X+4*s,4)}, v{XR+s} offset:{XO(0)}")

    def zchain(nt, fb):
        z = Z + 16 * nt
        l = [mf(z, F[fb], WC + 4 * nt, None), sp(z, OHT, PT + 8 * nt, OHT + 3, 1)]
        l += [mf(z, X + 4 * ks, WB + 4 * (2 * ks + nt), z) for ks in range(4)]
        return l

    o("s_waitcnt lgkmcnt(0)")
    for m in zchain(0, 0):
        o(m)
    if O["G1POS"] == 3:
        g1()
    if O["ISS"] == 0:
        emit_group(D0, D1, 0, CP, GL[0])
    o(f"""s_cmp_eq_u32 s{S_T}, 0
    s_cbranch_scc1 K2_DRAIN""")

    def half(par, nt):
        zc, zn = Z + 16 * nt, Z + 16 * (1 - nt)
        accp = ACC + 16 * (1 - nt)
        nb = par ^ 1
        ex = [f"v_exp_f32 v{zc+i}, v{zc+i}" for i in range(16)]
        rc = [f"v_rcp_f32 v{zc+i}, v{zc+i}" for i in range(16)]
        hm = [mf(HV, X + 4 * ks, WV + 4 * (2 * ks + nt), None if ks == 0 else HV) for ks in range(4)]
        sm = [sp(accp, OH + 4 * t, zn + 8 * t, SIX, 0) for t in range(2)]
        zm = zchain(1 - nt, nb if nt else par)
        ab = O["ABL"]
        if "H" in ab: hm = [""] * 4
        if "B" in ab: zm = zm[:2] + [""] * 4
        if "S" in ab: sm = [""] * 2
        if "P" in ab: zm[1] = ""
        if "X" in ab: ex = [""] * 16
        if "R" in ab: rc = [""] * 16
        xrd = [f"ds_read_b128 {vr(X+4*s,4)}, v{XR+s} offset:{XO(nb)}" for s in range(4)]
        ohs = [f"ds_write_b16 v{OHA}, v{ONE}", f"ds_read_b128 {vr(OH,4)}, v{OHR}",
               f"ds_read_b128 {vr(OH+4,4)}, v{OHR} offset:512", f"ds_write_b16 v{OHA}, v{ZERO}"]
        I = O["ISS"]
        ep = O["EPOS"][I // 2]
        prio(1)
        if nt == 0:
            o(f"ds_read_u8 v{LOC}, v{LD1} offset:{(par+1)*128+3}")
            o(f"ds_read_b32 v{D1}, v{LD1} offset:{D1OFF+(par+(3 if ep == 'c' else 2))*128}")
        else:
            o("s_waitcnt lgkmcnt(0)")
            if O["TST"]:
                o(f"s_mov_b32 m0, s{S_T}")
                o("s_nop 3")
                o(f"v_writelane_b32 v{TM+6}, s60, m0")
                o(f"v_writelane_b32 v{TM+7}, s62, m0")
        c = [int(x, 16) for x in O["T1"]]
        seq = ex[0:c[0]] + [hm[0]] + ex[c[0]:c[1]] + [hm[1]] + ex[c[1]:c[2]] + [hm[2]] + ex[c[2]:c[3]] + [hm[3]]
        if nt == 1:
            seq += [f"s_waitcnt vmcnt({(0 if I == 2 else 4) + (ep != 'l')})"] + xrd
        seq += ex[c[3]:c[4]] + [sm[0]] + ex[c[4]:c[5]] + [sm[1]]
        if nt == 0:
            seq += ohs
        seq += ex[c[5]:16]
        for s_ in seq:
            o(s_)
        prio(0)
        for i in range(16):
            o(f"v_add_f32 v{zc+i}, s{S_ONE}, v{zc+i}")
        if nt == 1 and ep == "c":
            for i in range(4):
                o(f"v_mov_b32 v{F[nb]+i}, v{GL[nb]+i}")
        prio(1)
        dofs = (par + (2 if I == 2 else 3)) * 128
        adv = [f"v_add_u32 v{LD0}, 0x100, v{LD0}", f"v_add_u32 v{LD1}, 0x100, v{LD1}"] if par == 1 else []
        ins, mem, _ = group(D0, D1, nb if I == 0 else par)
        e = group(D0, D1, par, GL[nb] if ep == "c" else None)[2]
        if "M" in ab:
            mem = [("", "")] * 4
            e = ""
        if nt == 0:
            o(rc[0]); o(rc[1]); o(zm[0])
            o("s_waitcnt lgkmcnt(4)")
            o(rc[2]); o(rc[3])
            o(f"v_lshl_add_u32 v{LUTA}, v{LOC}, 1, v{LUTB}")
            o(ins[4])
            o(zm[1])
            o(f"ds_read_b128 {vr(OHT,4)}, v{LUTA}")
            if ep == "e":
                o(e)
            o(rc[4]); o(rc[5]); o(rc[6]); o(zm[2])
            o(f"ds_read_b128 {vr(D0,4)}, v{LD0} offset:{dofs}")
            o(rc[7]); o(rc[8]); o(rc[9]); o(zm[3])
            o(rc[10]); o(rc[11]); o(rc[12]); o(zm[4])
            o(rc[13]); o(rc[14]); o(rc[15])
            for s_ in adv:
                o(s_)
            o(zm[5])
        else:
            o(rc[0]); o(rc[1]); o(zm[0])
            o(rc[2]); o(rc[3]); o(ins[0]); o(ins[1]); o(zm[1])
            o(rc[4]); o(rc[5]); o(ins[2]); o(ins[3])
            o(f"v_lshl_add_u32 v{OHA}, v{LOC}, 1, v{OHW}")
            if ep == "l" and I == 0:
                o(e)
            o("s_waitcnt lgkmcnt(0)")
            o(mem[0][0])
            o(zm[2])
            o(mem[0][1]); o(mem[1][0])
            o(rc[6]); o(mem[1][1]); o(mem[2][0]); o(rc[7]); o(rc[8]); o(zm[3])
            o(mem[2][1]); o(mem[3][0])
            o(rc[9]); o(mem[3][1]); o(rc[10]); o(rc[11]); o(zm[4])
            if ep == "c" or (ep == "l" and I == 2):
                o(e)
            o(rc[12]); o(rc[13]); o(rc[14]); o(zm[5])
            o(rc[15])
        prio(0)
        if O["TST"] and nt == 0:
            o("s_memrealtime s[60:61]")
            o("s_memtime s[62:63]")
        for i in range(16):
            o(f"v_mul_f32 v{zc+i}, v{zc+i}, v{HV+i}")

    if O["TST"]:
        o(f"v_mov_b32 v{TM+6}, 0")
        o(f"v_mov_b32 v{TM+7}, 0")

    stubs = []

    def loop(lab, nxt=None):
        o(f"{lab}:")
        for par in range(2):
            if par:
                o(f"{lab}_1:")
            half(par, 0)
            half(par, 1)
            o(f"s_sub_u32 s{S_T}, s{S_T}, 1")
            o(f"s_cmp_eq_u32 s{S_T}, 0")
            if nxt is None:
                o("s_cbranch_scc1 K2_DRAIN" if par == 0 else f"s_cbranch_scc0 {lab}")
            else:
                o("s_cbranch_scc1 K2_DRAIN")
                o(f"s_cmp_eq_u32 s{S_T}, s42")
                o(f"s_cselect_b32 s10, 0, s43")
                if CP:
                    o(f"s_cselect_b32 s6, 0, s45")
                o(f"s_cmp_eq_u32 s{S_T}, s41")
                o(f"s_cbranch_scc1 {nxt}_{'T' if CP else 1}" if par == 0 else f"s_cbranch_scc0 {lab}")
        if nxt is not None and CP:
            stubs.append(nxt)
            o("s_waitcnt vmcnt(5)")
            for i in range(4):
                o(f"v_mov_b32 v{F[1]+i}, v{GL[1]+i}")

    sw = O["SW"] if O["ISS"] == 0 else ""

    def loops(lab):
        if sw:
            loop(lab, lab + "S")
            O["ISS"] = 2
            loop(lab + "S")
            O["ISS"] = 0
        else:
            loop(lab)
    if sw:
        o(f"""s_lshl_b32 s41, s{S_W}, 2
        s_lshr_b32 s41, {int(sw[::-1], 16):#x}, s41
        s_and_b32 s41, s41, 15
        s_sub_u32 s41, s{S_T}, s41
        s_add_u32 s42, s41, 1
        s_mov_b32 s43, s10
        s_mov_b32 s45, s6
        s_nop 0""")
    else:
        o("s_nop 7")
    o(f"s_cmp_lt_u32 s{S_W}, 4")
    o("s_cbranch_scc1 K2_LOOP")
    keep = pmap[:]
    pmap[:] = [int(c) for c in O["PRB"]]
    loops("K2_LOOPB")
    o("s_branch K2_DRAIN")
    pmap[:] = keep
    loops("K2_LOOP")
    o("K2_DRAIN:")
    stamp()
    o("s_nop 1")
    for t in range(2):
        o(sp(ACC + 16, OH + 4 * t, Z + 16 + 8 * t, SIX, 0))
    o(f"""s_cmp_lt_u32 s{S_K0}, {E}
    s_cbranch_scc1 K2_NEXT
    v_and_b32 v{TM}, 31, v{LANE}
    v_lshlrev_b32 v{TM}, 2, v{TM}
    v_lshl_add_u32 v{TM}, v{H16}, 5, v{TM}
    s_nop 7""")
    NR = 13

    def silu(regs):
        for a, t in regs:
            o(f"v_mul_f32 v{t}, s{S_NL}, v{a}")
        for a, t in regs:
            o(f"v_exp_f32 v{t}, v{t}")
        for a, t in regs:
            o(f"v_add_f32 v{t}, 1.0, v{t}")
        for a, t in regs:
            o(f"v_rcp_f32 v{t}, v{t}")
        for a, t in regs:
            o(f"v_mul_f32 v{t}, v{t}, v{a}")
    silu([(ACC + i, Z + i) for i in range(NR)])
    for lo, hi in ((0, 5), (5, 9), (9, 13)):
        silu([(ACC + 16 + i, Z + 16 + i) for i in range(lo, hi)])
        for i in range(lo, hi):
            o(f"v_cvt_pk_bf16_f32 v{HV+i}, v{Z+i}, v{Z+16+i}")
            o(f"buffer_store_dword v{HV+i}, v{TM}, s[20:23], s{S_BASE} offen offset:{(8*(i//4)+i%4)*128}{fl('K2_O')}")
    if O["TST"]:
        o(f"""s_lshl_b32 s58, s2, 3
        s_add_u32 s58, s58, s{S_W}
        s_lshl_b32 s58, s58, 9
        s_add_u32 s58, s58, {SOFF + (1 << 20)}
        v_lshlrev_b32 v{TM+5}, 2, v{LANE}
        buffer_store_dword v{TM+6}, v{TM+5}, s[12:15], s58 offen
        buffer_store_dword v{TM+7}, v{TM+5}, s[12:15], s58 offen offset:256""")
    stamp_out(12, S_W, 8, TM)
    o("""K2_END:
    s_endpgm""")
    for lab in stubs:
        o(f"{lab}_T:")
        o("s_waitcnt vmcnt(5)")
        for i in range(4):
            o(f"v_mov_b32 v{F[0]+i}, v{GL[0]+i}")
        o(f"s_branch {lab}_1")
    def epoch(t):
        o(f"""s_mov_b64 exec, 1
        v_mov_b32 v{t}, {KTAG:#x}
        buffer_atomic_add v{t}, v{ZERO}, s[12:15], 0 offen sc1
        s_mov_b64 exec, -1""")
    o("K2_EP:")
    epoch(PA)
    o("s_branch K2_EPR")
    o(f"""K2_G0:
    ds_read_b128 {vr(D0,4)}, v{LD0}
    ds_read_b32 v{D1}, v{LD1} offset:{D1OFF}
    s_waitcnt lgkmcnt(0)""")
    emit_group(D0, D1, 0)
    o("s_branch K2_G0R")
    o(f"""K2_P2:
    s_cmp_lg_u32 s{S_TIER}, 0
    s_mov_b32 s{S_TIER}, 0
    s_cbranch_scc1 K2_P2R
    s_mov_b32 s{S_TIER}, 1
    s_barrier""")
    fill(0, 9)
    o(f"""v_add_u32 v{KQ}, 32, v{KQ}
    s_waitcnt vmcnt(0) lgkmcnt(0)
    s_barrier""")
    for i in range(7):
        o(f"v_subrev_u32 v{RK1[i]}, 32, v{RK1[i]}")
        img_write(i)
    o(f"s_add_u32 s57, s57, {2*TOFF}")
    o("s_branch K2_PASS")
    o(f"""K2_PR:
    s_sub_u32 s{S_C}, s{S_C}, 1
    s_cbranch_scc1 K2_TO
    s_mov_b64 exec, vcc""")
    polls()
    o(f"""s_waitcnt vmcnt(0)
    s_branch K2_PV
    K2_TO:""")
    epoch(PA)
    for j in range(4):
        o(f"s_mov_b64 s[{MK(j)}:{MK(j)+1}], 0")
    o(f"ds_write_b32 v{CNB}, v{ZERO} offset:256")
    o(f"""s_branch K2_X7
    K2_TN:
    s_add_u32 s{S_TIER}, s{S_TIER}, 1
    s_cmp_ge_u32 s{S_TIER}, 3
    s_cbranch_scc1 K2_OV""")
    for j in range(4):
        o(f"s_mov_b64 exec, s[{MK(j)}:{MK(j)+1}]")
        o(f"v_cmp_lt_u32_sdwa s[{MK(j)}:{MK(j)+1}], s40, v{TQ(j)} src0_sel:DWORD src1_sel:BYTE_2")
        o(f"s_add_u32 s{50+j}, s{50+j}, {TOFF}")
    o(f"""s_waitcnt lgkmcnt(0)
    K2_TR:
    s_sub_u32 s{S_C}, s{S_C}, 1
    s_cbranch_scc1 K2_OV""")
    tloads()
    o(f"""s_waitcnt vmcnt(0)
    s_branch K2_TV
    K2_OV:
    s_mov_b64 exec, -1
    ds_write_b32 v{CNB}, v{ZERO} offset:256
    s_branch K2_B3""")
    o(f"""K2_FB:
    s_mov_b32 s{S_K0}, 0
    s_mov_b32 s{S_T}, s{S_LB}
    s_mov_b32 s{S_FLAG}, 1
    s_branch K2_R1
    K2_NEXT:
    s_mov_b32 s10, {N*128}
    s_mov_b32 s6, {E*32}
    s_waitcnt vmcnt(0) lgkmcnt(0)
    s_barrier
    v_mov_b32 v{TM+2}, {L_CNT}
    v_lshl_add_u32 v{TM+3}, v{LANE}, 2, v{TM+2}
    v_mul_u32_u24 v{TM+4}, {SG}, v{LANE}
    v_add_u32 v{TM+4}, {L_D0-32*SG}, v{TM+4}
    ds_write_b32 v{TM+3}, v{TM+4}
    v_add_u32 v{TM+4}, {32*4}, v{TM+4}
    v_mov_b32 v{X}, 127
    v_mov_b32 v{X+1}, 4
    s_mov_b32 s45, {E}
    s_waitcnt lgkmcnt(0)
    s_barrier
    K2_SCAN:
    v_add_u32 v{TM+6}, s{S_K0}, v0
    v_lshlrev_b32 v{TM+5}, 2, v{TM+6}
    buffer_load_dword v{X+2}, v{TM+5}, s[96:99], 0 offen
    buffer_load_dword v{X+3}, v{TM+5}, s[16:19], 0 offen
    v_cmp_gt_u32 s[46:47], s45, v{TM+6}
    v_lshlrev_b32 v{TM+6}, 5, v{TM+6}
    s_add_u32 s{S_K0}, s{S_K0}, 512
    s_waitcnt vmcnt(0)
    v_mul_hi_u32 v{X+4}, v{X+2}, s{S_M32}
    v_lshrrev_b32 v{X+5}, 3, v{X+4}
    v_cmp_eq_u32 vcc, s{S_BK}, v{X+5}
    v_mad_u32_u24 v{X+5}, v{X+4}, s{S_3125}, v{X}
    v_lshrrev_b32 v{X+5}, 7, v{X+5}
    v_sub_u32 v{X+5}, v{X+2}, v{X+5}
    v_and_b32 v{X+4}, 7, v{X+4}
    v_lshl_add_u32 v{X+4}, v{X+4}, 4, v{TM+2}
    v_lshlrev_b32 v{X+5}, 27, v{X+5}
    v_lshl_or_b32 v{X+5}, v{X+3}, 7, v{X+5}
    s_and_b64 exec, vcc, s[46:47]
    ds_add_rtn_u32 v{X+4}, v{X+4}, v{X+1} offset:128
    s_waitcnt lgkmcnt(0)
    ds_write2st64_b32 v{X+4}, v{X+5}, v{TM+6} offset0:0 offset1:{D1O}
    s_mov_b64 exec, -1
    s_waitcnt lgkmcnt(0)
    s_barrier
    ds_read_b32 v{X+4}, v{TM+3}
    s_waitcnt lgkmcnt(0)
    s_barrier
    v_cmp_lt_u32 vcc, v{TM+4}, v{X+4}
    s_cmp_ge_u32 s{S_K0}, s45
    s_cbranch_scc1 K2_RN
    s_cbranch_vccz K2_SCAN
    K2_RN:
    s_lshr_b32 s46, s{S_SUB8}, 1
    s_add_u32 s46, s46, 32
    v_readlane_b32 s{S_T}, v{X+4}, s46""")
    ldparts()
    o(f"""v_add_u32 v{LD0}, s{S_LB}, v{LD0}
    v_add_u32 v{LD1}, s{S_LB}, v{LD1}
    v_add_u32 v{X}, s{S_T}, v{L4}
    v_mov_b32 v{X+1}, 0xf87fff80
    v_mov_b32 v{X+2}, 0x1ffffe0
    s_sub_u32 s{S_T}, s{S_T}, s{S_LB}
    s_add_u32 s{S_T}, s{S_T}, 127
    s_lshr_b32 s{S_T}, s{S_T}, 7
    ds_write2st64_b32 v{X}, v{X+1}, v{X+2} offset0:0 offset1:{D1O}
    ds_write2st64_b32 v{X}, v{X+1}, v{X+2} offset0:1 offset1:{D1O+1}
    s_branch K2_G0""")

    head = f"""; Edge-gated MPNN layer in one launch: every workgroup files its chunk of edges by destination
; @launch kernel={K2} grid=({NB},1,1) block=(512,1,1) lds={K2_LDS}
.amdgcn_target "amdgcn-amd-amdhsa--gfx950"
.text
"""

    def desc(name, vg):
        return f""".amdhsa_kernel {name}
  .amdhsa_next_free_vgpr {vg}
  .amdhsa_next_free_sgpr 102
  .amdhsa_accum_offset {vg}
  .amdhsa_group_segment_fixed_size 0
  .amdhsa_kernarg_size 80
  .amdhsa_user_sgpr_count 2
  .amdhsa_user_sgpr_kernarg_segment_ptr 1
  .amdhsa_system_sgpr_workgroup_id_x 1
  .amdhsa_float_denorm_mode_32 3
.end_amdhsa_kernel
"""
    tail = '.section .rodata,"a"\n.p2align 6\n' + desc(K2, 256)
    return head + o.text() + tail


if __name__ == "__main__":
    out = sys.argv[1]
    opt = {}
    for a in sys.argv[2:]:
        k, v = a.split("=", 1)
        opt[k] = int(v, 0) if isinstance(DEF[k], int) else float(v) if isinstance(DEF[k], float) else v.replace("+", " ")
    open(out, "w").write(gen(opt))
```

```python
import sys, struct, math

NAME = "gather_scatter__edge_featured_mpnn_egc__graph"
N, E = 50000, 800000
NB, CH, WCH = 256, 3125, 391

DEF = dict(
    LDI="nt",
    K2_X="", K2_E="", K2_O="sc1",
    HS="sc1",
    HL="sc1",
    PRA="01",
    PRB="02",
    STAMP=0,
    SPIN="",
    XPOS=3,
    WPOS=3,
    POLLS=4096,
    TST=0,
    ABL="",
    G1POS=2,
    FORCE="",
    ISS=0,
    SW="23452345",
    NPH=4,
    OWN=1,
    EARLY=1,
    NF0=4,
    DELTA=0.00282,
    T1="258bef",
    EPOS="cl",
    CB=0,
    HM=1,
    XMK=0x7fff80,
    EMK=0x1ffffe0,
)


def f2u(x):
    return struct.unpack("<I", struct.pack("<f", x))[0]


NLOG2E = f2u(-1.4426950408889634)
M32 = -(-(1 << 32) * 128 // 3125)
for d in range(N):
    g = (d * M32) >> 32
    assert g == d * 128 // 3125
    b = (g * 3125 + 127) >> 7
    assert 0 <= d - b < 25


class A:
    def __init__(self):
        self.l = []

    def __call__(self, s):
        for ln in s.split("\n"):
            ln = ln.strip()
            if ln:
                self.l.append(("" if ln.endswith(":") else "    ") + ln)

    def text(self):
        return "\n".join(self.l) + "\n"


def vr(a, n):
    return f"v[{a}:{a + n - 1}]"


def srd(o, d, lo, nrec):
    o(f"s_mov_b32 s{d}, s{lo}")
    o(f"s_and_b32 s{d+1}, s{lo+1}, 0xffff")
    if nrec is not None:
        o(f"s_mov_b32 s{d+2}, {nrec}")
    o(f"s_mov_b32 s{d+3}, 0x20000")


def gen(opt):
    O = dict(DEF)
    O.update(opt)
    BS = NB * 128 + 128
    TOFF = NB * BS
    META = 4096
    KTAG = 0x9E377000
    WSB = 268435456
    fl = lambda k: (" " + O[k]) if O[k] else ""

    o = A()
    SOFF = 200 << 20
    st = [0]

    cnt_ = [0]

    def stamp(keep=False):
        if O["SPIN"]:
            a_, b_ = [int(v) for v in O["SPIN"].split(",")[:2]]
            j = cnt_[0]
            cnt_[0] += 1
            if j in (0, a_, b_):
                o("s_memrealtime s[60:61]")
                o("s_memtime s[62:63]")
                o("s_waitcnt lgkmcnt(0)")
                for k_, w_ in enumerate((0, a_, b_)):
                    if j == w_:
                        o(f"s_mov_b32 s{64+2*k_}, s62")
                        o(f"s_mov_b32 s{65+2*k_}, s60")
            return
        if not O["STAMP"] or (O["STAMP"] == 2 and st[0] > 0 and not keep):
            return
        o("s_memrealtime s[60:61]")
        o("s_memtime s[62:63]")
        o("s_waitcnt lgkmcnt(0)")
        o(f"s_mov_b32 s{64+2*st[0]}, s62")
        o(f"s_mov_b32 s{65+2*st[0]}, s60")
        st[0] += 1
        assert st[0] <= 15

    def stamp_out(srd_, wv, nw, t):
        if O["SPIN"]:
            a_, b_, kind, who = O["SPIN"].split(",")
            o("s_waitcnt vmcnt(0)")
            stamp()
            if kind == "t":
                o("s_sub_u32 s58, s69, s67")
            else:
                o("s_sub_u32 s58, s68, s66")
                o("s_mul_hi_u32 s58, s58, 0x1999999a")
            if who != "all":
                o(f"s_lshl_b32 s59, s2, 3")
                o(f"s_add_u32 s59, s59, s{wv}")
                o(f"s_cmp_eq_u32 s59, {who}")
                o(f"s_cbranch_scc0 K2_END")
            o("s_min_u32 s58, s58, 20000")
            o("s_add_u32 s58, s58, 6000")
            o("K2_SPIN:")
            o("s_sleep 1")
            o("s_memrealtime s[60:61]")
            o("s_waitcnt lgkmcnt(0)")
            o("s_sub_u32 s60, s60, s65")
            o("s_cmp_lt_u32 s60, s58")
            o("s_cbranch_scc1 K2_SPIN")
            return
        if not O["STAMP"]:
            return
        o("s_waitcnt vmcnt(0)")
        stamp(True)
        o(f"s_mul_i32 s58, s2, {nw}")
        o(f"s_add_u32 s58, s58, s{wv}")
        o("s_lshl_b32 s58, s58, 7")
        o(f"s_add_u32 s58, s58, {SOFF}")
        o("s_waitcnt lgkmcnt(0)")
        o("s_mov_b64 exec, 1")
        o(f"v_mov_b32 v{t}, 0")
        rs = [64 + i for i in range(2 * st[0])]
        for i, r in enumerate(rs):
            o(f"v_mov_b32 v{t+1}, s{r}")
            o(f"buffer_store_dword v{t+1}, v{t}, s[{srd_}:{srd_+3}], s58 offen offset:{4*i}")
        o(f"v_mov_b32 v{t+1}, s{S_C}")
        o(f"buffer_store_dword v{t+1}, v{t}, s[{srd_}:{srd_+3}], s58 offen offset:124")
        sys.stderr.write(f"stamps: soff={SOFF} sn={st[0]} nw={nw}\n")

    K2 = NAME + "_kernel"
    SG = 696
    LS, CAPT = 4 * SG, 504
    D1OFF = 8 * LS
    D1O = D1OFF // 256
    XO = lambda b: 32768 if b == 0 else 0
    CNT1, IMG, ISTR = 32768, 33792, 272
    L_D0 = 0x10000
    L_OH = L_D0 + 2 * D1OFF
    L_LUT = L_OH + 16384
    L_CNT = L_LUT + 2048
    L_W = L_CNT + 512
    assert D1OFF % 256 == 0 and L_CNT % 256 == 0 and CAPT * 4 + 768 <= LS and LS % 16 == 0
    assert IMG + 9 * 8192 <= L_OH and (32 + 512) * 4 + 512 <= LS
    K2_LDS = L_W + 34 * 1024
    assert K2_LDS <= 163840
    XR, LP, LD0, LD1, H16, LUTB, OHW, OHR, ONE, ZERO, LOC = 1, 5, 7, 8, 9, 10, 11, 12, 13, 14, 15
    WB, WV, WC, PT, ACC, Z, HV, MSG, X, EC, OHT, OH = 16, 48, 80, 88, 104, 136, 168, 184, 192, 208, 216, 224
    D0, D1, LUTA, OHA, LANE = 232, 236, 237, 238, 239
    F = [240, 244]
    TM = 248
    S_W, S_T, S_MASK, S_BUF, S_TIER, S_FLAG, S_FIRST, S_C, S_K0, S_M32, S_BK, S_EM, S_NL = 3, 24, 25, 26, 28, 29, 30, 31, 32, 33, 34, 35, 36
    S_LB, S_BASE, S_SUB8, S_TAG, S_3125 = 37, 38, 39, 94, 95
    S_G6 = 100
    mf = lambda d, a, b, c: f"v_mfma_f32_32x32x16_bf16 {vr(d,16)}, {vr(a,4)}, {vr(b,4)}, " + (vr(c, 16) if c is not None else "0")
    sp = lambda d, a, b, ix, hi: f"v_smfmac_f32_32x32x32_bf16 {vr(d,16)}, {vr(a,4)}, {vr(b,8)}, v{ix}" + (" abid:1" if hi else "")
    SIX, S_ONE = 220, 44
    pmap = [int(c) for c in O["PRA"]]
    prio = lambda p: o(f"s_setprio {pmap[p]}")

    q = []

    def vw(*tags):
        last = max(i for i, t in enumerate(q) if t in tags)
        return sum(1 for t in q[last + 1:] if t not in ("h", "T"))

    DST = [104, 105, 106, 108, 109, 110, 112]
    SRC = [114, 115, 116, 118, 119, 120, 122]
    G = [124 + i for i in range(7)]
    MT = lambda i: 140 + 2 * i
    RK1 = [154 + i for i in range(7)]
    BK = [161 + i for i in range(7)]
    T0, T1, V1, V127 = 131, 132, 133, 134
    RA, RC, GA, KQ = 135, 136, 137, 138
    FIL, FA, FB = 232, 236, 237
    LOQ = lambda r: 168 + 4 * r
    HIQ = lambda r: 184 + 4 * r
    CN, AC = 200, 204
    WR = 16
    WA, XA = 243, 244
    ZQ = 64

    def fill(lo, hi):
        for r in range(lo, hi):
            o(f"ds_write_b128 v{FA}, {vr(FIL,4)} offset:{8192*r}" if r < 8 else f"ds_write_b128 v{FB}, {vr(FIL,4)}")

    o(f""".globl {K2}
    .p2align 8
    .type {K2},@function
    {K2}:
    s_load_dwordx8 s[40:47], s[0:1], 0
    s_load_dwordx2 s[56:57], s[0:1], 72
    s_load_dwordx8 s[48:55], s[0:1], 32
    s_cmp_ge_u32 s2, {NB}
    s_cbranch_scc1 K2_END
    v_lshrrev_b32 v{TM}, 6, v0
    v_and_b32 v{LANE}, 63, v0
    v_readfirstlane_b32 s{S_W}, v{TM}
    v_lshlrev_b32 v{TM+1}, 4, v0
    s_lshl_b32 s58, s2, 3
    v_lshl_add_u32 v{TM+2}, v0, 1, s58
    v_and_b32 v{FIL}, 62, v{TM+2}
    v_mov_b32 v{FIL+1}, 0
    v_xor_b32 v{FIL+2}, 32, v{FIL}
    v_mov_b32 v{FIL+3}, 0
    v_add_u32 v{FA}, {IMG}, v{TM+1}""")
    fill(0, O["NF0"])
    o(f"""v_mul_u32_u24 v{TM+3}, 12, v{LANE}
    v_lshlrev_b32 v{TM+2}, 2, v{LANE}
    s_mul_i32 s58, s2, {CH*4}
    s_mul_i32 s59, s{S_W}, {WCH*4}
    s_add_u32 s58, s58, s59
    s_mov_b32 s98, {E*4}
    s_mov_b32 s99, 0x20000
    s_mov_b32 s18, {E*4}
    s_mov_b32 s19, 0x20000
    v_add_u32 v{FB}, {IMG+65536}, v{TM+1}
    v_mov_b32 v{ZQ}, 0
    v_mov_b32 v{ZQ+1}, 0
    v_mov_b32 v{ZQ+2}, 0
    v_mov_b32 v{ZQ+3}, 0
    v_lshlrev_b32 v{WA}, 4, v{LANE}
    s_waitcnt lgkmcnt(0)""")
    stamp()
    o("s_mov_b32 s96, s46")
    o("s_and_b32 s97, s47, 0xffff")

    def idx_loads(regs, sr, tag):
        o(f"buffer_load_dwordx3 {vr(regs[0],3)}, v{TM+3}, s[{sr}:{sr+3}], s58 offen{fl('LDI')}")
        o(f"buffer_load_dwordx3 {vr(regs[3],3)}, v{TM+3}, s[{sr}:{sr+3}], s58 offen offset:768{fl('LDI')}")
        o(f"buffer_load_dword v{regs[6]}, v{TM+2}, s[{sr}:{sr+3}], s58 offen offset:1536{fl('LDI')}")
        q.extend([tag + "0", tag + "1", tag + "2"])
    idx_loads(DST, 96, "D")
    o("s_mov_b32 s16, s44")
    o("s_and_b32 s17, s45, 0xffff")
    idx_loads(SRC, 16, "S")
    o(f"s_load_dword s{S_TAG}, s[56:57], 0")
    o(f"ds_write_b128 v{WA}, {vr(ZQ,4)} offset:{CNT1}")
    fill(O["NF0"], 9)
    srd(o, 8, 40, N * 128)
    srd(o, 4, 42, E * 32)
    srd(o, 12, 56, WSB)
    srd(o, 20, 54, None)
    o(f"""s_mov_b32 s40, s52
    s_and_b32 s41, s53, 0xffff
    s_movk_i32 s42, {144*128}
    s_mov_b32 s43, 0x20000
    s_lshl_b32 s{S_T}, s{S_W}, 11
    s_cmp_lt_u32 s{S_W}, 5
    s_cselect_b32 s48, s50, s48
    s_cselect_b32 s49, s51, s49
    s_cselect_b32 s56, 1, 5
    s_sub_u32 s{S_K0}, s{S_W}, s56
    s_movk_i32 s50, 8192
    s_cmp_eq_u32 s{S_W}, 0
    s_cselect_b32 s48, s52, s48
    s_cselect_b32 s49, s53, s49
    s_cselect_b32 s{S_K0}, 8, s{S_K0}
    s_cselect_b32 s50, s42, s50
    s_lshl_b32 s{S_K0}, s{S_K0}, 11
    s_and_b32 s49, s49, 0xffff
    s_mov_b32 s51, 0x20000""")

    def wts():
        o(f"""s_add_u32 m0, s{S_T}, {L_W}
        s_cmp_lg_u32 s{S_W}, 7
        buffer_load_dwordx4 v{WA}, s[40:43], s{S_T} offen lds
        buffer_load_dwordx4 v{WA}, s[40:43], s{S_T} offen offset:1024 lds
        s_add_u32 m0, s{S_T}, {L_W+16384}
        s_cmp_lg_u32 s{S_W}, 7
        buffer_load_dwordx4 v{WA}, s[48:51], s{S_K0} offen lds
        buffer_load_dwordx4 v{WA}, s[48:51], s{S_K0} offen offset:1024 lds
        s_cbranch_scc1 K2_W3
        buffer_load_dwordx4 v{WA}, s[48:51], s{S_K0} offen offset:2048 lds
        buffer_load_dwordx4 v{WA}, s[48:51], s{S_K0} offen offset:3072 lds
        K2_W3:""")
        q.extend(["W"] * 4)

    def nodebase(sub):
        o(f"""s_lshl_b32 s{S_BASE}, s{S_BK}, 3
        s_add_u32 s{S_BASE}, s{S_BASE}, s{sub}
        s_mul_i32 s{S_BASE}, s{S_BASE}, 3125
        s_add_u32 s22, s{S_BASE}, {3125+127}
        s_add_u32 s{S_BASE}, s{S_BASE}, 127
        s_and_b32 s{S_BASE}, s{S_BASE}, -128
        s_and_b32 s22, s22, -128""")

    def side(pos):
        if O["WPOS"] == pos:
            wts()
        if O["XPOS"] == pos:
            o(f"s_mov_b32 m0, s{S_BUF+1}")
            o("s_nop 0")
            for s in range(4):
                o(f"buffer_load_dwordx4 v{XA+(s&1)}, s[8:11], s{S_BASE} offen offset:{s*1024} lds")
            q.extend(['X'] * 4)
    o(f"""s_mov_b32 s{S_M32}, {M32}
    s_movk_i32 s{S_3125}, 3125
    s_cmp_eq_u32 s{S_W}, 7
    s_cselect_b32 s{S_G6}, 15, 0x7f
    s_mov_b32 s{S_G6+1}, 0
    s_mul_i32 s59, s{S_W}, {WCH}
    v_mov_b32 v{V1}, 1
    v_mov_b32 v{V127}, 127
    s_mov_b32 s{S_TIER}, 0
    s_movk_i32 s52, 1342
    s_mov_b32 s54, 0x800000
    s_movk_i32 s55, {ISTR//4}
    s_waitcnt lgkmcnt(0)
    s_barrier""")
    stamp()
    o(f"""s_add_u32 s{S_TAG}, s{S_TAG}, {KTAG:#x}
    s_and_b32 s{S_TAG}, s{S_TAG}, 0xfffff000
    v_mad_u32_u24 v{MT(0)+1}, v{LANE}, 3, s59
    v_add_u32 v{MT(6)+1}, s59, v{LANE}""")
    for i in range(1, 6):
        o(f"v_add_u32 v{MT(i)+1}, {(i//3)*192+i%3}, v{MT(0)+1}")
    o(f"""v_add_u32 v{MT(6)+1}, 384, v{MT(6)+1}
    v_lshrrev_b32 v{TM+2}, 3, v0
    v_and_b32 v{TM+4}, 0x70, v{TM+1}
    v_lshlrev_b32 v{RC}, 2, v{TM+2}
    v_mul_u32_u24 v{RA}, {ISTR}, v{TM+2}
    v_add3_u32 v{RA}, v{RA}, v{TM+4}, v{FA}
    v_sub_u32 v{RA}, v{RA}, v{TM+1}
    v_mul_u32_u24 v{GA}, {BS}, v{TM+2}
    v_add_u32 v{GA}, v{GA}, v{TM+4}
    v_lshrrev_b32 v{KQ}, 3, v{TM+4}
    v_add_u32 v{KQ}, 16, v{KQ}
    s_lshl_b32 s57, s2, 7
    s_add_u32 s57, s57, {META}
    s_and_b32 s{S_BK}, s2, 7
    s_lshl_b32 s{S_BK}, s{S_BK}, 5
    s_lshr_b32 s58, s2, 3
    s_or_b32 s{S_BK}, s{S_BK}, s58""")
    nodebase(S_W)
    o(f"""v_lshrrev_b32 v{TM+2}, 4, v{LANE}
    v_xor_b32 v{TM+2}, v{TM+2}, v{LANE}
    v_and_b32 v{TM+2}, 7, v{TM+2}
    v_lshlrev_b32 v{LP}, 4, v{TM+2}
    v_xor_b32 v{LP+1}, 64, v{LP}
    v_lshrrev_b32 v{TM+3}, 3, v{LANE}
    s_lshl_b32 s{S_BUF+1}, s{S_W}, 12
    s_add_u32 s{S_BUF}, s{S_BUF+1}, 0x8000
    v_lshl_add_u32 v{XA}, v{TM+3}, 7, v{LP}
    v_lshl_add_u32 v{XA+1}, v{TM+3}, 7, v{LP+1}""")
    ob = L_OH - IMG - 65536
    o(f"""ds_write_b128 v{FB}, {vr(ZQ,4)} offset:{ob}
    ds_write_b128 v{FB}, {vr(ZQ,4)} offset:{ob+8192}
    s_cmp_ge_u32 s{S_W}, 2
    s_cbranch_scc1 K2_Z
    ds_write_b128 v{FB}, {vr(ZQ,4)} offset:{ob+16384}
    K2_Z:
    s_cmp_lg_u32 s{S_W}, 2
    s_cbranch_scc1 K2_Z2
    v_cmp_lt_u32 vcc, 31, v{LANE}
    v_mul_u32_u24 v{TM+5}, {SG}, v{LANE}
    v_add_u32 v{TM+5}, {L_D0-32*SG}, v{TM+5}
    v_bfrev_b32 v{TM+2}, 2
    v_cndmask_b32 v{TM+2}, v{TM+2}, v{TM+5}, vcc
    v_lshlrev_b32 v{TM+4}, 2, v{LANE}
    v_add_u32 v{TM+4}, {L_CNT}, v{TM+4}
    ds_write2st64_b32 v{TM+4}, v{TM+2}, v{TM+2} offset0:0 offset1:1
    K2_Z2:""")
    side(1)
    for i in range(7):
        if i in (0, 3, 6):
            o(f"s_waitcnt vmcnt({vw(f'D{i//3}')})")
            if i == 0:
                stamp()
        o(f"v_mul_hi_u32 v{G[i]}, v{DST[i]}, s{S_M32}")
        o(f"v_lshrrev_b32 v{BK[i]}, 1, v{G[i]}")
        o(f"v_and_b32 v{BK[i]}, 0x3fc, v{BK[i]}")
        if i == 6:
            o(f"s_mov_b64 exec, s[{S_G6}:{S_G6+1}]")
        o(f"ds_add_rtn_u32 v{RK1[i]}, v{BK[i]}, v{V1} offset:{CNT1}")
        if i == 6:
            o("s_mov_b64 exec, -1")
    side(2)
    for i in range(7):
        o(f"v_mad_u32_u24 v{T0}, v{G[i]}, s{S_3125}, v{V127}")
        o(f"v_lshrrev_b32 v{T0}, 7, v{T0}")
        o(f"v_sub_u32 v{T0}, v{DST[i]}, v{T0}")
        o(f"v_and_b32 v{T1}, 7, v{G[i]}")
        o(f"v_lshl_or_b32 v{T1}, v{T1}, 3, 64")
        o(f"v_lshl_or_b32 v{MT(i)}, v{T0}, 27, v{T1}")
        o(f"v_and_b32 v{DST[i]}, {0x700 if O['OWN'] else 0}, v{G[i]}")
        o(f"v_mul_i32_i24 v{DST[i]}, {(-(1 << 15)) & 0xffffffff:#x}, v{DST[i]}")
        o(f"v_mul_u32_u24 v{BK[i]}, s55, v{BK[i]}")

    def img_write(i):
        o(f"v_min_u32 v{G[i]}, 32, v{RK1[i]}")
        o(f"v_lshl_add_u32 v{G[i]}, v{G[i]}, 3, v{BK[i]}")
        if i == 6:
            o(f"s_mov_b64 exec, s[{S_G6}:{S_G6+1}]")
        o(f"ds_write_b64 v{G[i]}, {vr(MT(i),2)} offset:{IMG}")
        if i == 6:
            o("s_mov_b64 exec, -1")
    for i in range(7):
        w = f"vmcnt({vw(f'S{i//3}')}) " if i in (0, 3, 6) else ""
        o(f"s_waitcnt {w}lgkmcnt(6)")
        o(f"v_mad_u32_u24 v{T0}, v{SRC[i]}, s52, v{DST[i]}")
        o(f"v_lshl_or_b32 v{MT(i)}, v{SRC[i]}, 7, v{MT(i)}")
        o(f"v_lshrrev_b32 v{T0}, 23, v{T0}")
        if O["NPH"] != 4:
            o(f"v_bfi_b32 v{T0}, {4 if O['NPH'] == 2 else 0}, v{T0}, v{SRC[i]}")
        o(f"v_and_or_b32 v{MT(i)}, v{T0}, 6, v{MT(i)}")
        img_write(i)
    side(3)
    o("""K2_PASS:
    s_waitcnt lgkmcnt(0)
    s_barrier""")
    stamp()
    for r in range(4):
        o(f"ds_read_b32 v{CN+r}, v{RC} offset:{CNT1+256*r}")
        o(f"ds_read_b128 {vr(HIQ(r),4)}, v{RA} offset:{64*ISTR*r+128}")
        o(f"ds_read_b128 {vr(LOQ(r),4)}, v{RA} offset:{64*ISTR*r}")
    o(f"ds_read_b128 {vr(AC,4)}, v{WA} offset:{CNT1}")
    for r in range(4):
        lo, hi = LOQ(r), HIQ(r)
        o(f"""s_add_u32 s44, s57, {TOFF+64*BS*r}
        s_add_u32 s56, s57, {64*BS*r}
        s_waitcnt lgkmcnt({11-3*r})
        v_sub_u32 v{CN+r}, v{KQ}, v{CN+r}
        v_or_b32 v{hi+1}, s{S_TAG}, v{hi+1}
        {f"v_bitop3_b32 v{T1}, v{GA}, v{CN+r}, 2.0 bitop3:0xf2" if O["HM"] else f"v_cmp_gt_i32 vcc, 0, v{CN+r}"}
        v_add_u32 v{T0}, 16, v{CN+r}
        v_or_b32 v{hi+3}, s{S_TAG}, v{hi+3}
        v_and_or_b32 v{hi}, v{T0}, s54, v{hi}
        {"" if O["HM"] else "s_mov_b64 exec, vcc"}
        buffer_store_dwordx4 {vr(hi,4)}, v{T1 if O["HM"] else GA}, s[12:15], s44 offen{fl('HS')}
        {"" if O["HM"] else "s_mov_b64 exec, -1"}
        s_waitcnt lgkmcnt({10-3*r})
        v_and_or_b32 v{lo}, v{CN+r}, s54, v{lo}
        v_or_b32 v{lo+1}, s{S_TAG}, v{lo+1}
        v_or_b32 v{lo+3}, s{S_TAG}, v{lo+3}
        buffer_store_dwordx4 {vr(lo,4)}, v{GA}, s[12:15], s56 offen{fl('HS')}""")
        q.extend(["H" if O["HM"] else "h", "H"])
    o(f"""s_waitcnt lgkmcnt(0)
    v_max_u32 v{AC}, v{AC}, v{AC+1}
    v_max3_u32 v{AC}, v{AC}, v{AC+2}, v{AC+3}
    v_cmp_lt_u32 vcc, 32, v{AC}
    s_cbranch_vccnz K2_P2
    K2_P2R:""")
    stamp()
    LQ = lambda j: Z + 4 * j
    TQ = lambda j: Z + 16 + 4 * j
    CA, RK = ACC, ACC + 16
    CB, LA, VA, V4, CNB = X, X + 4, X + 5, X + 6, X + 7
    KI, KJ = X + 8, X + 12
    KJA, CII, CIJ, SHV, PA, PB, PC = 80, 81, 82, 83, 84, 85, 86
    KIA, L4, EXA = TM + 5, TM + 7, TM + 1
    MK = lambda j: 42 + 2 * j
    o(f"""v_and_b32 v{TM+2}, 31, v{LANE}
    v_lshrrev_b32 v{TM+4}, 5, v{LANE}
    s_add_u32 s47, s{S_T}, {L_W}
    v_lshlrev_b32 v{TM+6}, 2, v{TM+2}
    v_lshl_add_u32 v{TM+6}, v{TM+4}, 10, v{TM+6}
    v_add_u32 v{TM+6}, s47, v{TM+6}
    v_add_u32 v{TM+3}, 0x4000, v{TM+6}
    s_waitcnt vmcnt({vw('W')})""")

    def wread(raw, a, off):
        for j in range(4):
            o(f"ds_read2_b32 {vr(raw+2*j,2)}, v{a} offset0:{off+64*j} offset1:{off+64*j+32}")

    def wconv(raw, sc, off):
        t = 40
        for j in range(8):
            o(f"v_lshlrev_b32 v{t+j}, 16, v{raw+j}")
            o(f"v_and_b32 v{t+8+j}, 0xffff0000, v{raw+j}")
        if sc is not None:
            for j in range(16):
                o(f"v_mul_f32 v{t+j}, s{sc}, v{t+j}")
        for j in range(4):
            o(f"v_cvt_pk_bf16_f32 v{raw+j}, v{t+2*j}, v{t+2*j+1}")
            o(f"v_cvt_pk_bf16_f32 v{raw+4+j}, v{t+8+2*j}, v{t+8+2*j+1}")
        o(f"ds_write_b128 v{TM+1}, {vr(raw,4)} offset:{off}")
        o(f"ds_write_b128 v{TM+1}, {vr(raw+4,4)} offset:{off+1024}")
    wread(WR, TM + 6, 0)
    wread(WR + 8, TM + 3, 0)
    o(f"""s_mov_b32 s{S_NL}, {NLOG2E:#x}
    s_mov_b32 s44, 1.0
    s_cmp_ge_u32 s{S_W}, 4
    s_cselect_b32 s45, s{S_NL}, s44
    s_cmp_eq_u32 s{S_W}, 0
    s_cselect_b32 s46, s{S_NL}, s44
    v_add_u32 v{TM+1}, s47, v{WA}
    v_add_u32 v{TM}, {L_W}, v{WA}
    v_lshlrev_b32 v{H16}, 4, v{TM+4}
    v_bfe_u32 v{TM+5}, v{TM+2}, 1, 3
    v_xor_b32 v{TM+5}, v{TM+5}, v{TM+4}
    v_lshlrev_b32 v{TM+5}, 4, v{TM+5}
    v_lshl_add_u32 v{TM+5}, v{TM+2}, 7, v{TM+5}
    v_add_u32 v{XR}, s{S_BUF+1}, v{TM+5}
    v_xor_b32 v{XR+1}, 32, v{XR}
    v_xor_b32 v{XR+2}, 64, v{XR}
    v_xor_b32 v{XR+3}, 0x60, v{XR}
    v_lshlrev_b32 v{LA}, 4, v0
    s_mul_i32 s50, s{S_BK}, {BS}
    s_add_u32 s50, s50, {META}
    s_add_u32 s51, s50, 8192
    s_add_u32 s52, s50, 16384
    s_add_u32 s53, s50, 24576""")
    o("s_waitcnt lgkmcnt(4)")
    wconv(WR, 45, 0)
    o("s_waitcnt lgkmcnt(2)")
    wconv(WR + 8, 46, 16384)
    o(f"""s_cmp_lg_u32 s{S_W}, 7
    s_cbranch_scc1 K2_W4
    v_add_u32 v{TM+3}, 0x800, v{TM+3}""")
    wread(WR + 16, TM + 3, 0)
    o("s_waitcnt lgkmcnt(0)")
    wconv(WR + 16, None, 16384 + 2048)
    o("K2_W4:")

    def tabs():
        o(f"""v_lshlrev_b32 v{LUTB}, 10, v{TM+4}
        s_lshl_b32 s45, s{S_W}, 11
        s_add_u32 s45, s45, {L_OH}
        v_lshl_add_u32 v{OHR}, v{TM+2}, 4, v{LUTB}
        v_add_u32 v{OHR}, s45, v{OHR}
        v_add_u32 v{LUTB}, {L_LUT}, v{LUTB}
        v_bfe_u32 v{TM+5}, v{TM+2}, 3, 1
        v_lshlrev_b32 v{OHW}, 10, v{TM+5}
        v_lshrrev_b32 v{TM+4}, 4, v{TM+2}
        v_lshl_add_u32 v{OHW}, v{TM+4}, 9, v{OHW}
        v_and_b32 v{TM+6}, 7, v{TM+2}
        v_lshl_add_u32 v{OHW}, v{TM+6}, 1, v{OHW}
        v_add_u32 v{OHW}, s45, v{OHW}
        v_lshlrev_b32 v{OHA}, 10, v{TM+4}
        v_lshl_add_u32 v{OHA}, v{TM+2}, 4, v{OHA}
        v_add_u32 v{OHA}, {L_LUT}, v{OHA}
        v_and_b32 v{TM+4}, 4, v{TM+2}
        v_lshlrev_b32 v{TM+5}, 2, v{TM+5}
        v_lshl_add_u32 v{TM+5}, v{TM+4}, 1, v{TM+5}
        v_and_b32 v{TM+4}, 3, v{TM+2}
        v_lshlrev_b32 v{TM+4}, v{TM+5}, v{TM+4}
        v_add_u32 v{TM+5}, v{OHA}, v{TM+5}
        v_mov_b32 v{ONE}, 0x3f80
        ds_write_b16 v{OHA}, v{TM+4} offset:14
        ds_write_b16 v{TM+5}, v{ONE}""")
    if O["CB"] == 0:
        tabs()
    o(f"s_waitcnt vmcnt(0) lgkmcnt(0)")
    o("s_barrier")
    stamp()

    def polls():
        for j in range(4):
            o(f"buffer_load_dwordx4 {vr(LQ(j),4)}, v{LA}, s[12:15], s{50+j} offen{fl('HL')}")
    polls()
    q.extend(["L"] * 4)
    XI, FA_, FU_, ZI = Z + 16, 16, 48, [168, 208]
    for ks in range(4):
        o(f"ds_read_b128 {vr(XI+4*ks,4)}, v{XR+ks} offset:{XO(1)}")
        for nt in range(2):
            o(f"ds_read_b128 {vr(FA_+8*ks+4*nt,4)}, v{TM} offset:{(2*ks+nt)*1024}")
    for f in range(8):
        o(f"ds_read_b128 {vr(FU_+4*f,4)}, v{TM} offset:{(26+f)*1024}")

    def ldparts():
        o(f"""v_lshrrev_b32 v{LD0}, 3, v{LANE}
        v_and_b32 v{LD1}, 3, v{LD0}
        v_lshlrev_b32 v{LD0}, 4, v{LD0}
        v_lshlrev_b32 v{L4}, 2, v{LANE}
        v_lshl_or_b32 v{LD1}, v{LANE}, 2, v{LD1}
        v_and_b32 v{LD1}, 31, v{LD1}
        v_lshlrev_b32 v{LD1}, 2, v{LD1}""")
    ck = (1 - 8 * LS) & 0xffffffff
    fillers = f"""v_mov_b32 v{ZERO}, 0
    s_mov_b32 s{S_MASK}, {O['XMK']:#x}
    s_mov_b32 s{S_FIRST}, 1
    s_mov_b32 s{S_EM}, {O['EMK']:#x}
    s_movk_i32 s{S_C}, {O['POLLS']}
    v_add_u32 v{EXA}, s{S_BUF+1}, v{WA}
    v_lshrrev_b32 v{CB}, 3, v0
    s_lshl_b32 s58, s{S_TAG}, 5
    v_mul_u32_u24 v{CB}, {CH*32}, v{CB}
    v_subrev_u32 v{CB}, s58, v{CB}
    v_mov_b32 v{V4}, 4
    v_mov_b32 v{CNB}, {L_CNT}
    v_lshrrev_b32 v{CII}, 3, v{LANE}
    v_and_b32 v{SHV}, 7, v{LANE}
    v_lshl_add_u32 v{KJA}, v{SHV}, 4, v{CNB}
    v_mul_i32_i24 v{CII}, {ck:#x}, v{CII}
    v_mul_i32_i24 v{CIJ}, {ck:#x}, v{SHV}
    v_lshlrev_b32 v{SHV}, 3, v{SHV}
    s_mov_b32 s56, {L_D0+D1OFF-4}
    s_movk_i32 s57, 0xfff
    s_movk_i32 s40, 127
    s_sub_u32 s41, 11, s{S_W}
    s_cmp_lt_u32 s{S_W}, 4
    s_cselect_b32 s41, s{S_W}, s41
    v_add_u32 v{CB+1}, {64*CH*32}, v{CB}
    v_add_u32 v{CB+2}, {64*CH*32*2}, v{CB}
    v_add_u32 v{CB+3}, {64*CH*32*3}, v{CB}
    v_mov_b32 v{D1}, {f2u(-math.log2(1 + O['DELTA'])):#x}""".split("\n")
    ldparts()
    for ks in range(4):
        if ks in (0, 2):
            o(f"s_waitcnt lgkmcnt({14 if ks == 0 else 8})")
        for nt in range(2):
            o(mf(ZI[nt], XI + 4 * ks, FA_ + 8 * ks + 4 * nt, None if ks == 0 else ZI[nt]))
            for _ in range(4):
                if fillers:
                    o(fillers.pop(0))
    assert not fillers
    post = []
    for nt in range(2):
        post += [f"v_fma_f32 v{ZI[nt]+i}, v{ZI[nt]+i}, s{S_NL}, v{D1}" for i in range(16)]
        post += [f"v_cvt_pk_bf16_f32 v{PT+8*nt+k}, v{ZI[nt]+2*k}, v{ZI[nt]+2*k+1}" for k in range(8)]
        post += [f"ds_write_b128 v{EXA}, {vr(PT+8*nt+4*k,4)} offset:{2048*nt+1024*k}" for k in range(2)]
    for ks in range(4):
        if ks in (0, 2):
            o(f"s_waitcnt lgkmcnt({4 if ks == 0 else 0})")
        for nt in range(2):
            o(mf(ACC + 16 * nt, XI + 4 * ks, FU_ + 8 * ks + 4 * nt, None if ks == 0 else ACC + 16 * nt))
            if ks == 1 and nt == 1:
                o("s_nop 7")
            if ks >= 2:
                for _ in range(6):
                    o(post.pop(0))
    for p_ in post:
        o(p_)
    for nt in range(2):
        for k in range(7):
            o(f"v_cvt_pk_bf16_f32 v{ACC+16*nt+k}, v{ACC+16*nt+2*k}, v{ACC+16*nt+2*k+1}")
        for k in range(2):
            o(f"ds_write_b128 v{EXA}, {vr(ACC+16*nt+4*k,4)} offset:{32768+2048*nt+1024*k}")
    if O["CB"] == 1:
        tabs()
    o(f"v_add_u32 v{KIA}, {L_CNT+128}, v{LD0}")
    if O["FORCE"] == "T":
        o(f"s_cmp_eq_u32 s2, 77")
        o(f"s_cselect_b32 s58, 0x1000, 0")
        o(f"s_xor_b32 s{S_TAG}, s{S_TAG}, s58")
    o(f"s_waitcnt vmcnt({vw('L')})")
    stamp()
    o("K2_PV:")
    for j in range(4):
        o(f"v_bitop3_b32 v{CA+j}, v{LQ(j)+1}, v{LQ(j)+3}, s{S_TAG} bitop3:0x7e")
    o(f"""v_or3_b32 v{CA}, v{CA}, v{CA+1}, v{CA+2}
    v_or_b32 v{CA}, v{CA}, v{CA+3}
    v_cmp_lt_u32 vcc, s57, v{CA}
    s_cbranch_vccnz K2_PR
    s_mov_b64 exec, -1""")
    for j in range(4):
        o(f"v_cmp_lt_u32_sdwa s[{MK(j)}:{MK(j)+1}], s40, v{LQ(j)} src0_sel:DWORD src1_sel:BYTE_2")
        o(f"s_add_u32 s{50+j}, s{50+j}, {TOFF}")

    def tloads():
        for j in range(4):
            o(f"s_mov_b64 exec, s[{MK(j)}:{MK(j)+1}]")
            o(f"buffer_load_dwordx4 {vr(TQ(j),4)}, v{LA}, s[12:15], s{50+j} offen{fl('HL')}")
        o("s_mov_b64 exec, -1")
    tloads()
    q.extend(["T"] * 4)

    def atom(m, i):
        o(f"v_bfe_u32 v{CA+i}, v{m}, 1, 6")
        o(f"v_lshl_add_u32 v{CA+i}, v{CA+i}, 2, v{CNB}")
        o(f"ds_add_rtn_u32 v{RK+i}, v{CA+i}, v{V4}")

    def wr(m, i):
        o(f"v_min_u32 v{RK+i}, s56, v{RK+i}")
        o(f"ds_write2st64_b32 v{RK+i}, v{m}, v{m+1} offset0:0 offset1:{D1O}")
    for i in range(8):
        atom(Z + 2 * i, i)
    for i in range(8):
        o(f"v_lshl_add_u32 v{Z+2*i+1}, v{Z+2*i+1}, 5, v{CB+i//2}")
    for i in range(8):
        o("s_waitcnt lgkmcnt(7)")
        wr(Z + 2 * i, i)
    o("K2_X7:")
    o("""s_waitcnt lgkmcnt(0)
    s_barrier""")
    stamp()

    def group(d0, d1, buf, ed=None):
        ins = []
        for s in range(4):
            ins.append(f"v_and_or_b32 v{d0+s}, v{d0+s}, s{S_MASK}, v{LP+(s&1)}")
        ins.append(f"v_and_or_b32 v{d1}, v{d1}, s{S_EM}, v{H16}")
        mem = []
        for s in range(4):
            m = f"s_mov_b32 m0, s{S_BUF+buf}" if s == 0 else "s_add_u32 m0, m0, 1024"
            mem.append((m, f"buffer_load_dwordx4 v{d0+s}, s[8:11], 0 offen lds{fl('K2_X')}"))
        e = f"buffer_load_dwordx4 {vr(F[buf] if ed is None else ed,4)}, v{d1}, s[4:7], 0 offen{fl('K2_E')}"
        return ins, mem, e

    def emit_group(d0, d1, buf, withe=True, ed=None, wait=""):
        ins, mem, e = group(d0, d1, buf, ed)
        for x_ in ins[:5 if withe else 4]:
            o(x_)
        o(wait)
        for m, l in mem:
            o(m)
            o("s_nop 0")
            o(l)
        if withe:
            o(e)

    o(f"""ds_read_b128 {vr(KI,4)}, v{KIA}
    ds_read_b128 {vr(KJ,4)}, v{KJA} offset:128
    s_or_b32 s58, s2, s{S_W}
    s_cbranch_scc0 K2_EP
    K2_EPR:
    s_waitcnt lgkmcnt(0)
    s_barrier
    v_add3_u32 v{PA}, v{KI}, v{KI+1}, v{KI+2}
    v_add3_u32 v{PB}, v{KJ}, v{KJ+1}, v{KJ+2}
    v_add_u32 v{PA}, v{PA}, v{KI+3}
    v_add_u32 v{PB}, v{PB}, v{KJ+3}
    v_lshl_add_u32 v{PA}, v{PA}, 1, v{CII}
    v_lshl_add_u32 v{PB}, v{PB}, 1, v{CIJ}
    v_cmp_gt_u32 vcc, v{PB}, v{PA}
    s_nop 1
    v_lshrrev_b64 {vr(PC,2)}, v{SHV}, vcc
    v_and_b32 v{PC}, 0xff, v{PC}
    v_bcnt_u32_b32 v{PC}, v{PC}, 0
    v_cmp_eq_u32 vcc, s41, v{PC}
    s_nop 0
    s_ff1_i32_b32 s54, vcc_lo
    s_mul_i32 s{S_LB}, s54, {LS}
    s_add_u32 s{S_LB}, s{S_LB}, {L_D0}
    v_add_u32 v{LD0}, s{S_LB}, v{LD0}
    v_add_u32 v{LD1}, s{S_LB}, v{LD1}
    ds_read_b128 {vr(D0,4)}, v{LD0}
    ds_read_b32 v{D1}, v{LD1} offset:{D1OFF}
s_xor_b32 s58, s54, s{S_W}
    s_lshl_b32 s58, s58, 12
    v_xor_b32 v{EXA}, s58, v{EXA}
    s_lshl_b32 s{S_SUB8}, s54, 3""")
    AP = 168
    for k in range(4):
        o(f"ds_read_b128 {vr(AP+4*k,4)}, v{EXA} offset:{32768+1024*k}")
    o(f"""v_readlane_b32 s55, v{KI}, s{S_SUB8}
    s_xor_b32 s{S_BUF}, s{S_BUF}, s58
    s_xor_b32 s{S_BUF+1}, s{S_BUF+1}, s58""")
    nodebase(54)
    o(f"""s_add_u32 s59, s{S_LB}, 128
    s_cmp_lt_u32 s55, s59
    s_cselect_b32 s{S_FLAG}, 1, {1 if (O['FORCE'] == 'R' or not O['EARLY']) else 0}""")
    if O["EARLY"]:
        o("s_waitcnt lgkmcnt(4)")
        emit_group(D0, D1, 0, wait="s_waitcnt lgkmcnt(0)")
        q.extend(["G"] * 5)
    stamp()
    for k in range(4):
        o(f"ds_read_b128 {vr(PT+4*k,4)}, v{EXA} offset:{1024*k}")

    def wfr():
        for f in range(2):
            o(f"ds_read_b128 {vr(WC+4*f,4)}, v{TM} offset:{(16+f)*1024}")
        for f in range(8):
            o(f"ds_read_b128 {vr(WB+4*f,4)}, v{TM} offset:{(8+f)*1024}")
        for f in range(8):
            o(f"ds_read_b128 {vr(WV+4*f,4)}, v{TM} offset:{(18+f)*1024}")
    wfr()
    for k in range(4):
        o(f"v_xor_b32 v{XR+k}, s58, v{XR+k}")
    SA = [ACC, ACC + 1, ACC + 2]
    C32, LIM, MS, SE0, SE1 = ACC + 3, ACC + 4, ACC + 5, ACC + 6, ACC + 7
    FL, CV = ACC + 16, ACC + 17
    CD = Z
    o(f"""v_add_u32 v{SA[0]}, s{S_LB}, v{L4}
    v_add_u32 v{SA[1]}, {2*SG}, v{SA[0]}
    v_add_u32 v{SA[2]}, {3*SG}, v{SA[0]}
    v_add_u32 v{SA[0]}, {SG}, v{SA[0]}
    v_add_u32 v{C32}, v{CNB}, v{L4}
    v_mul_u32_u24 v{LIM}, {SG}, v{LANE}
    v_add_u32 v{LIM}, {L_D0-31*SG}, v{LIM}
    v_lshrrev_b32 v{MS}, 3, v{LANE}
    v_mul_u32_u24 v{MS}, {4*LS}, v{MS}
    v_add_u32 v{MS}, {4*L_D0+6*SG+4*CAPT}, v{MS}
    v_mov_b32 v{SE0}, 0xf87fff80
    v_mov_b32 v{SE1}, 0x1ffffe0""")
    o(f"s_waitcnt vmcnt({vw('T')})")
    stamp()
    o("K2_TV:")
    o(f"v_mov_b32 v{VA}, 0")
    for j in range(4):
        o(f"v_bitop3_b32 v{CA+8+j}, v{TQ(j)+1}, v{TQ(j)+3}, s{S_TAG} bitop3:0x7e")
    for j in range(4):
        o(f"v_cndmask_b32 v{CA+8+j}, 0, v{CA+8+j}, s[{MK(j)}:{MK(j)+1}]")
    o(f"""v_or3_b32 v{CA+8}, v{CA+8}, v{CA+9}, v{CA+10}
    v_or_b32 v{CA+8}, v{CA+8}, v{CA+11}
    v_cmp_lt_u32 vcc, s57, v{CA+8}
    s_cbranch_vccnz K2_TR""")
    for j in range(4):
        o(f"s_mov_b64 exec, s[{MK(j)}:{MK(j)+1}]")
        atom(TQ(j), 8 + 2 * j)
        atom(TQ(j) + 2, 9 + 2 * j)
        o(f"v_or_b32 v{VA}, v{VA}, v{TQ(j)}")
    o("s_mov_b64 exec, -1")
    for i in range(8, 16):
        o(f"v_lshl_add_u32 v{Z+2*i+1}, v{Z+2*i+1}, 5, v{CB+(i-8)//2}")
    o(f"v_cmp_lt_u32_sdwa vcc, s40, v{VA} src0_sel:DWORD src1_sel:BYTE_2")
    o("s_waitcnt lgkmcnt(0)")
    for j in range(4):
        o(f"s_mov_b64 exec, s[{MK(j)}:{MK(j)+1}]")
        wr(TQ(j), 8 + 2 * j)
        wr(TQ(j) + 2, 9 + 2 * j)
    o("s_mov_b64 exec, -1")
    o("s_cbranch_vccnz K2_TN")
    o("K2_B3:")
    o("s_waitcnt lgkmcnt(0)")
    o("s_barrier")
    stamp()
    G1 = TM
    o(f"""ds_read_b128 {vr(KI,4)}, v{KIA}
    ds_read_b32 v{CV}, v{C32}
    ds_read_b32 v{FL}, v{CNB} offset:256""")
    for p in range(3):
        for k in range(3):
            o(f"ds_read2st64_b32 {vr(CD+6*p+2*k,2)}, v{SA[p]} offset0:{k} offset1:{D1O+k}")
    o(f"""s_mov_b32 s{S_K0}, {E}
    s_add_u32 s46, s{S_LB}, {SG}
    s_add_u32 s47, s{S_LB}, {2*SG}
    s_add_u32 s48, s{S_LB}, {3*SG}
    s_waitcnt lgkmcnt(9)
    v_readlane_b32 s40, v{KI}, s{S_SUB8}
    v_readlane_b32 s41, v{KI+1}, s{S_SUB8}
    v_readlane_b32 s42, v{KI+2}, s{S_SUB8}
    v_readlane_b32 s43, v{KI+3}, s{S_SUB8}
    v_readfirstlane_b32 s49, v{FL}
    v_add3_u32 v{KI}, v{KI}, v{KI+1}, v{KI+2}
    v_cmp_lt_u32 s[50:51], v{LIM}, v{CV}
    v_add_u32 v{KI}, v{KI}, v{KI+3}
    v_cmp_lt_u32 vcc, v{MS}, v{KI}
    s_sub_u32 s44, s41, s46
    s_add_u32 s44, s44, s40
    s_sub_u32 s45, s42, s47
    s_add_u32 s45, s45, s44
    s_sub_u32 s{S_T}, s43, s48
    s_add_u32 s{S_T}, s{S_T}, s45
    v_add_u32 v{SA[0]}, s40, v{L4}
    v_add_u32 v{SA[1]}, s44, v{L4}
    v_add_u32 v{SA[2]}, s45, v{L4}
    s_cbranch_vccnz K2_FB
    s_cmp_lg_u32 s51, 0
    s_cbranch_scc1 K2_FB
    s_bitcmp0_b32 s49, 30
    s_cbranch_scc1 K2_FB
    s_waitcnt lgkmcnt(0)""")
    for p in range(3):
        for k in range(3):
            o(f"ds_write2st64_b32 v{SA[p]}, v{CD+6*p+2*k}, v{CD+6*p+2*k+1} offset0:{k} offset1:{D1O+k}")
    o(f"""K2_R1:
    v_add_u32 v{SA[0]}, s{S_T}, v{L4}
    s_sub_u32 s{S_T}, s{S_T}, s{S_LB}
    s_add_u32 s{S_T}, s{S_T}, 127
    s_lshr_b32 s{S_T}, s{S_T}, 7
    ds_write2st64_b32 v{SA[0]}, v{SE0}, v{SE1} offset0:0 offset1:{D1O}
    ds_write2st64_b32 v{SA[0]}, v{SE0}, v{SE1} offset0:1 offset1:{D1O+1}
    s_cmp_lg_u32 s{S_FLAG}, 0
    s_cbranch_scc1 K2_G0
    K2_G0R:
    ds_read_b128 {vr(G1,4)}, v{LD0} offset:128
    ds_read_b32 v{G1+4}, v{LD1} offset:{D1OFF+128}
    ds_read_u8 v{LOC}, v{LD1} offset:3""")
    g1 = lambda: emit_group(G1, G1 + 4, 1, True, 188 if O["EPOS"][0] == "c" and O["ISS"] < 2 else None)
    if O["G1POS"] == 0:
        o("s_waitcnt lgkmcnt(0)")
        g1()
    o(f"""s_cmp_eq_u32 s{S_FIRST}, 0
    s_cbranch_scc1 K2_R2
    s_mov_b32 s{S_FIRST}, 0""")
    for nt in range(2):
        for k in range(7):
            o(f"v_lshlrev_b32 v{ACC+16*nt+2*k}, 16, v{AP+8*nt+k}")
            o(f"v_and_b32 v{ACC+16*nt+2*k+1}, 0xffff0000, v{AP+8*nt+k}")
    o(f"""K2_R2:
    s_waitcnt lgkmcnt(0)
    v_lshl_add_u32 v{LUTA}, v{LOC}, 1, v{LUTB}
    v_lshl_add_u32 v{OHA}, v{LOC}, 1, v{OHW}""")
    if O["G1POS"] == 2:
        g1()
    o(f"ds_read_b128 {vr(OHT,4)}, v{LUTA}")
    CP = O["EPOS"][0] == "c" and O["ISS"] < 2
    GL = [184, 188]
    if O["ISS"] < 2:
        o(f"ds_read_b128 {vr(D0,4)}, v{LD0} offset:256")
    if CP:
        o(f"ds_read_b32 v{D1}, v{LD1} offset:{D1OFF+256}")
    o(f"v_mov_b32 v{SIX}, 0xdddd")
    o(f"s_mov_b32 s{S_ONE}, {f2u(1 / (1 + O['DELTA'])):#x}")
    for i in range(16):
        o(f"v_mov_b32 v{Z+16+i}, 0")
    for i in range(8):
        o(f"v_mov_b32 v{OH+i}, 0")
    stamp()
    o(f"s_waitcnt vmcnt({0 if O['G1POS'] == 3 else 5})")
    stamp()
    for s in range(4):
        o(f"ds_read_b128 {vr(X+4*s,4)}, v{XR+s} offset:{XO(0)}")

    def zchain(nt, fb):
        z = Z + 16 * nt
        l = [mf(z, F[fb], WC + 4 * nt, None), sp(z, OHT, PT + 8 * nt, OHT + 3, 1)]
        l += [mf(z, X + 4 * ks, WB + 4 * (2 * ks + nt), z) for ks in range(4)]
        return l

    o("s_waitcnt lgkmcnt(0)")
    for m in zchain(0, 0):
        o(m)
    if O["G1POS"] == 3:
        g1()
    if O["ISS"] == 0:
        emit_group(D0, D1, 0, CP, GL[0])
    o(f"""s_cmp_eq_u32 s{S_T}, 0
    s_cbranch_scc1 K2_DRAIN""")

    def half(par, nt):
        zc, zn = Z + 16 * nt, Z + 16 * (1 - nt)
        accp = ACC + 16 * (1 - nt)
        nb = par ^ 1
        ex = [f"v_exp_f32 v{zc+i}, v{zc+i}" for i in range(16)]
        rc = [f"v_rcp_f32 v{zc+i}, v{zc+i}" for i in range(16)]
        hm = [mf(HV, X + 4 * ks, WV + 4 * (2 * ks + nt), None if ks == 0 else HV) for ks in range(4)]
        sm = [sp(accp, OH + 4 * t, zn + 8 * t, SIX, 0) for t in range(2)]
        zm = zchain(1 - nt, nb if nt else par)
        ab = O["ABL"]
        if "H" in ab: hm = [""] * 4
        if "B" in ab: zm = zm[:2] + [""] * 4
        if "S" in ab: sm = [""] * 2
        if "P" in ab: zm[1] = ""
        if "X" in ab: ex = [""] * 16
        if "R" in ab: rc = [""] * 16
        xrd = [f"ds_read_b128 {vr(X+4*s,4)}, v{XR+s} offset:{XO(nb)}" for s in range(4)]
        ohs = [f"ds_write_b16 v{OHA}, v{ONE}", f"ds_read_b128 {vr(OH,4)}, v{OHR}",
               f"ds_read_b128 {vr(OH+4,4)}, v{OHR} offset:512", f"ds_write_b16 v{OHA}, v{ZERO}"]
        I = O["ISS"]
        ep = O["EPOS"][I // 2]
        prio(1)
        if nt == 0:
            o(f"ds_read_u8 v{LOC}, v{LD1} offset:{(par+1)*128+3}")
            o(f"ds_read_b32 v{D1}, v{LD1} offset:{D1OFF+(par+(3 if ep == 'c' else 2))*128}")
        else:
            o("s_waitcnt lgkmcnt(0)")
            if O["TST"]:
                o(f"s_mov_b32 m0, s{S_T}")
                o("s_nop 3")
                o(f"v_writelane_b32 v{TM+6}, s60, m0")
                o(f"v_writelane_b32 v{TM+7}, s62, m0")
        c = [int(x, 16) for x in O["T1"]]
        seq = ex[0:c[0]] + [hm[0]] + ex[c[0]:c[1]] + [hm[1]] + ex[c[1]:c[2]] + [hm[2]] + ex[c[2]:c[3]] + [hm[3]]
        if nt == 1:
            seq += [f"s_waitcnt vmcnt({(0 if I == 2 else 4) + (ep != 'l')})"] + xrd
        seq += ex[c[3]:c[4]] + [sm[0]] + ex[c[4]:c[5]] + [sm[1]]
        if nt == 0:
            seq += ohs
        seq += ex[c[5]:16]
        for s_ in seq:
            o(s_)
        prio(0)
        for i in range(16):
            o(f"v_add_f32 v{zc+i}, s{S_ONE}, v{zc+i}")
        if nt == 1 and ep == "c":
            for i in range(4):
                o(f"v_mov_b32 v{F[nb]+i}, v{GL[nb]+i}")
        prio(1)
        dofs = (par + (2 if I == 2 else 3)) * 128
        adv = [f"v_add_u32 v{LD0}, 0x100, v{LD0}", f"v_add_u32 v{LD1}, 0x100, v{LD1}"] if par == 1 else []
        ins, mem, _ = group(D0, D1, nb if I == 0 else par)
        e = group(D0, D1, par, GL[nb] if ep == "c" else None)[2]
        if "M" in ab:
            mem = [("", "")] * 4
            e = ""
        if nt == 0:
            o(rc[0]); o(rc[1]); o(zm[0])
            o("s_waitcnt lgkmcnt(4)")
            o(rc[2]); o(rc[3])
            o(f"v_lshl_add_u32 v{LUTA}, v{LOC}, 1, v{LUTB}")
            o(ins[4])
            o(zm[1])
            o(f"ds_read_b128 {vr(OHT,4)}, v{LUTA}")
            if ep == "e":
                o(e)
            o(rc[4]); o(rc[5]); o(rc[6]); o(zm[2])
            o(f"ds_read_b128 {vr(D0,4)}, v{LD0} offset:{dofs}")
            o(rc[7]); o(rc[8]); o(rc[9]); o(zm[3])
            o(rc[10]); o(rc[11]); o(rc[12]); o(zm[4])
            o(rc[13]); o(rc[14]); o(rc[15])
            for s_ in adv:
                o(s_)
            o(zm[5])
        else:
            o(rc[0]); o(rc[1]); o(zm[0])
            o(rc[2]); o(rc[3]); o(ins[0]); o(ins[1]); o(zm[1])
            o(rc[4]); o(rc[5]); o(ins[2]); o(ins[3])
            o(f"v_lshl_add_u32 v{OHA}, v{LOC}, 1, v{OHW}")
            if ep == "l" and I == 0:
                o(e)
            o("s_waitcnt lgkmcnt(0)")
            o(mem[0][0])
            o(zm[2])
            o(mem[0][1]); o(mem[1][0])
            o(rc[6]); o(mem[1][1]); o(mem[2][0]); o(rc[7]); o(rc[8]); o(zm[3])
            o(mem[2][1]); o(mem[3][0])
            o(rc[9]); o(mem[3][1]); o(rc[10]); o(rc[11]); o(zm[4])
            if ep == "c" or (ep == "l" and I == 2):
                o(e)
            o(rc[12]); o(rc[13]); o(rc[14]); o(zm[5])
            o(rc[15])
        prio(0)
        if O["TST"] and nt == 0:
            o("s_memrealtime s[60:61]")
            o("s_memtime s[62:63]")
        for i in range(16):
            o(f"v_mul_f32 v{zc+i}, v{zc+i}, v{HV+i}")

    if O["TST"]:
        o(f"v_mov_b32 v{TM+6}, 0")
        o(f"v_mov_b32 v{TM+7}, 0")

    stubs = []

    def loop(lab, nxt=None):
        o(f"{lab}:")
        for par in range(2):
            if par:
                o(f"{lab}_1:")
            half(par, 0)
            half(par, 1)
            o(f"s_sub_u32 s{S_T}, s{S_T}, 1")
            o(f"s_cmp_eq_u32 s{S_T}, 0")
            if nxt is None:
                o("s_cbranch_scc1 K2_DRAIN" if par == 0 else f"s_cbranch_scc0 {lab}")
            else:
                o("s_cbranch_scc1 K2_DRAIN")
                o(f"s_cmp_eq_u32 s{S_T}, s42")
                o(f"s_cselect_b32 s10, 0, s43")
                if CP:
                    o(f"s_cselect_b32 s6, 0, s45")
                o(f"s_cmp_eq_u32 s{S_T}, s41")
                o(f"s_cbranch_scc1 {nxt}_{'T' if CP else 1}" if par == 0 else f"s_cbranch_scc0 {lab}")
        if nxt is not None and CP:
            stubs.append(nxt)
            o("s_waitcnt vmcnt(5)")
            for i in range(4):
                o(f"v_mov_b32 v{F[1]+i}, v{GL[1]+i}")

    sw = O["SW"] if O["ISS"] == 0 else ""

    def loops(lab):
        if sw:
            loop(lab, lab + "S")
            O["ISS"] = 2
            loop(lab + "S")
            O["ISS"] = 0
        else:
            loop(lab)
    if sw:
        o(f"""s_lshl_b32 s41, s{S_W}, 2
        s_lshr_b32 s41, {int(sw[::-1], 16):#x}, s41
        s_and_b32 s41, s41, 15
        s_sub_u32 s41, s{S_T}, s41
        s_add_u32 s42, s41, 1
        s_mov_b32 s43, s10
        s_mov_b32 s45, s6
        s_nop 0""")
    else:
        o("s_nop 7")
    o(f"s_cmp_lt_u32 s{S_W}, 4")
    o("s_cbranch_scc1 K2_LOOP")
    keep = pmap[:]
    pmap[:] = [int(c) for c in O["PRB"]]
    loops("K2_LOOPB")
    o("s_branch K2_DRAIN")
    pmap[:] = keep
    loops("K2_LOOP")
    o("K2_DRAIN:")
    stamp(True)
    o("s_nop 1")
    for t in range(2):
        o(sp(ACC + 16, OH + 4 * t, Z + 16 + 8 * t, SIX, 0))
    o(f"""s_cmp_lt_u32 s{S_K0}, {E}
    s_cbranch_scc1 K2_NEXT
    v_and_b32 v{TM}, 31, v{LANE}
    v_lshlrev_b32 v{TM}, 2, v{TM}
    v_lshl_add_u32 v{TM}, v{H16}, 5, v{TM}
    s_nop 7""")
    NR = 13

    def silu(regs):
        for a, t in regs:
            o(f"v_mul_f32 v{t}, s{S_NL}, v{a}")
        for a, t in regs:
            o(f"v_exp_f32 v{t}, v{t}")
        for a, t in regs:
            o(f"v_add_f32 v{t}, 1.0, v{t}")
        for a, t in regs:
            o(f"v_rcp_f32 v{t}, v{t}")
        for a, t in regs:
            o(f"v_mul_f32 v{t}, v{t}, v{a}")
    silu([(ACC + i, Z + i) for i in range(NR)])
    for lo, hi in ((0, 5), (5, 9), (9, 13)):
        silu([(ACC + 16 + i, Z + 16 + i) for i in range(lo, hi)])
        for i in range(lo, hi):
            o(f"v_cvt_pk_bf16_f32 v{HV+i}, v{Z+i}, v{Z+16+i}")
            o(f"buffer_store_dword v{HV+i}, v{TM}, s[20:23], s{S_BASE} offen offset:{(8*(i//4)+i%4)*128}{fl('K2_O')}")
    if O["TST"]:
        o(f"""s_lshl_b32 s58, s2, 3
        s_add_u32 s58, s58, s{S_W}
        s_lshl_b32 s58, s58, 9
        s_add_u32 s58, s58, {SOFF + (1 << 20)}
        v_lshlrev_b32 v{TM+5}, 2, v{LANE}
        buffer_store_dword v{TM+6}, v{TM+5}, s[12:15], s58 offen
        buffer_store_dword v{TM+7}, v{TM+5}, s[12:15], s58 offen offset:256""")
    stamp_out(12, S_W, 8, TM)
    o("""K2_END:
    s_endpgm""")
    for lab in stubs:
        o(f"{lab}_T:")
        o("s_waitcnt vmcnt(5)")
        for i in range(4):
            o(f"v_mov_b32 v{F[0]+i}, v{GL[0]+i}")
        o(f"s_branch {lab}_1")
    def epoch(t):
        o(f"""s_mov_b64 exec, 1
        v_mov_b32 v{t}, {KTAG:#x}
        buffer_atomic_add v{t}, v{ZERO}, s[12:15], 0 offen sc1
        s_mov_b64 exec, -1""")
    o("K2_EP:")
    epoch(PA)
    o("s_branch K2_EPR")
    o(f"""K2_G0:
    ds_read_b128 {vr(D0,4)}, v{LD0}
    ds_read_b32 v{D1}, v{LD1} offset:{D1OFF}
    s_waitcnt lgkmcnt(0)""")
    emit_group(D0, D1, 0)
    o("s_branch K2_G0R")
    o(f"""K2_P2:
    s_cmp_lg_u32 s{S_TIER}, 0
    s_mov_b32 s{S_TIER}, 0
    s_cbranch_scc1 K2_P2R
    s_mov_b32 s{S_TIER}, 1
    s_barrier""")
    fill(0, 9)
    o(f"""v_add_u32 v{KQ}, 32, v{KQ}
    s_waitcnt vmcnt(0) lgkmcnt(0)
    s_barrier""")
    for i in range(7):
        o(f"v_subrev_u32 v{RK1[i]}, 32, v{RK1[i]}")
        img_write(i)
    o(f"s_add_u32 s57, s57, {2*TOFF}")
    o("s_branch K2_PASS")
    o(f"""K2_PR:
    s_sub_u32 s{S_C}, s{S_C}, 1
    s_cbranch_scc1 K2_TO
    s_mov_b64 exec, vcc""")
    polls()
    o(f"""s_waitcnt vmcnt(0)
    s_branch K2_PV
    K2_TO:""")
    epoch(PA)
    for j in range(4):
        o(f"s_mov_b64 s[{MK(j)}:{MK(j)+1}], 0")
    o(f"ds_write_b32 v{CNB}, v{ZERO} offset:256")
    o(f"""s_branch K2_X7
    K2_TN:
    s_add_u32 s{S_TIER}, s{S_TIER}, 1
    s_cmp_ge_u32 s{S_TIER}, 3
    s_cbranch_scc1 K2_OV""")
    for j in range(4):
        o(f"s_mov_b64 exec, s[{MK(j)}:{MK(j)+1}]")
        o(f"v_cmp_lt_u32_sdwa s[{MK(j)}:{MK(j)+1}], s40, v{TQ(j)} src0_sel:DWORD src1_sel:BYTE_2")
        o(f"s_add_u32 s{50+j}, s{50+j}, {TOFF}")
    o(f"""s_waitcnt lgkmcnt(0)
    K2_TR:
    s_sub_u32 s{S_C}, s{S_C}, 1
    s_cbranch_scc1 K2_OV""")
    tloads()
    o(f"""s_waitcnt vmcnt(0)
    s_branch K2_TV
    K2_OV:
    s_mov_b64 exec, -1
    ds_write_b32 v{CNB}, v{ZERO} offset:256
    s_branch K2_B3""")
    o(f"""K2_FB:
    s_mov_b32 s{S_K0}, 0
    s_mov_b32 s{S_T}, s{S_LB}
    s_mov_b32 s{S_FLAG}, 1
    s_branch K2_R1
    K2_NEXT:
    s_mov_b32 s10, {N*128}
    s_mov_b32 s6, {E*32}
    s_waitcnt vmcnt(0) lgkmcnt(0)
    s_barrier
    v_mov_b32 v{TM+2}, {L_CNT}
    v_lshl_add_u32 v{TM+3}, v{LANE}, 2, v{TM+2}
    v_mul_u32_u24 v{TM+4}, {SG}, v{LANE}
    v_add_u32 v{TM+4}, {L_D0-32*SG}, v{TM+4}
    ds_write_b32 v{TM+3}, v{TM+4}
    v_add_u32 v{TM+4}, {32*4}, v{TM+4}
    v_mov_b32 v{X}, 127
    v_mov_b32 v{X+1}, 4
    s_mov_b32 s45, {E}
    s_waitcnt lgkmcnt(0)
    s_barrier
    K2_SCAN:
    v_add_u32 v{TM+6}, s{S_K0}, v0
    v_lshlrev_b32 v{TM+5}, 2, v{TM+6}
    buffer_load_dword v{X+2}, v{TM+5}, s[96:99], 0 offen
    buffer_load_dword v{X+3}, v{TM+5}, s[16:19], 0 offen
    v_cmp_gt_u32 s[46:47], s45, v{TM+6}
    v_lshlrev_b32 v{TM+6}, 5, v{TM+6}
    s_add_u32 s{S_K0}, s{S_K0}, 512
    s_waitcnt vmcnt(0)
    v_mul_hi_u32 v{X+4}, v{X+2}, s{S_M32}
    v_lshrrev_b32 v{X+5}, 3, v{X+4}
    v_cmp_eq_u32 vcc, s{S_BK}, v{X+5}
    v_mad_u32_u24 v{X+5}, v{X+4}, s{S_3125}, v{X}
    v_lshrrev_b32 v{X+5}, 7, v{X+5}
    v_sub_u32 v{X+5}, v{X+2}, v{X+5}
    v_and_b32 v{X+4}, 7, v{X+4}
    v_lshl_add_u32 v{X+4}, v{X+4}, 4, v{TM+2}
    v_lshlrev_b32 v{X+5}, 27, v{X+5}
    v_lshl_or_b32 v{X+5}, v{X+3}, 7, v{X+5}
    s_and_b64 exec, vcc, s[46:47]
    ds_add_rtn_u32 v{X+4}, v{X+4}, v{X+1} offset:128
    s_waitcnt lgkmcnt(0)
    ds_write2st64_b32 v{X+4}, v{X+5}, v{TM+6} offset0:0 offset1:{D1O}
    s_mov_b64 exec, -1
    s_waitcnt lgkmcnt(0)
    s_barrier
    ds_read_b32 v{X+4}, v{TM+3}
    s_waitcnt lgkmcnt(0)
    s_barrier
    v_cmp_lt_u32 vcc, v{TM+4}, v{X+4}
    s_cmp_ge_u32 s{S_K0}, s45
    s_cbranch_scc1 K2_RN
    s_cbranch_vccz K2_SCAN
    K2_RN:
    s_lshr_b32 s46, s{S_SUB8}, 1
    s_add_u32 s46, s46, 32
    v_readlane_b32 s{S_T}, v{X+4}, s46""")
    ldparts()
    o(f"""v_add_u32 v{LD0}, s{S_LB}, v{LD0}
    v_add_u32 v{LD1}, s{S_LB}, v{LD1}
    v_add_u32 v{X}, s{S_T}, v{L4}
    v_mov_b32 v{X+1}, 0xf87fff80
    v_mov_b32 v{X+2}, 0x1ffffe0
    s_sub_u32 s{S_T}, s{S_T}, s{S_LB}
    s_add_u32 s{S_T}, s{S_T}, 127
    s_lshr_b32 s{S_T}, s{S_T}, 7
    ds_write2st64_b32 v{X}, v{X+1}, v{X+2} offset0:0 offset1:{D1O}
    ds_write2st64_b32 v{X}, v{X+1}, v{X+2} offset0:1 offset1:{D1O+1}
    s_branch K2_G0""")

    head = f"""; Edge-gated MPNN layer in one launch: every workgroup files its chunk of edges by destination
; @launch kernel={K2} grid=({NB},1,1) block=(512,1,1) lds={K2_LDS}
.amdgcn_target "amdgcn-amd-amdhsa--gfx950"
.text
"""

    def desc(name, vg):
        return f""".amdhsa_kernel {name}
  .amdhsa_next_free_vgpr {vg}
  .amdhsa_next_free_sgpr 102
  .amdhsa_accum_offset {vg}
  .amdhsa_group_segment_fixed_size 0
  .amdhsa_kernarg_size 80
  .amdhsa_user_sgpr_count 2
  .amdhsa_user_sgpr_kernarg_segment_ptr 1
  .amdhsa_system_sgpr_workgroup_id_x 1
  .amdhsa_float_denorm_mode_32 3
.end_amdhsa_kernel
"""
    tail = '.section .rodata,"a"\n.p2align 6\n' + desc(K2, 256)
    return head + o.text() + tail


if __name__ == "__main__":
    out = sys.argv[1]
    opt = {}
    for a in sys.argv[2:]:
        k, v = a.split("=", 1)
        opt[k] = int(v, 0) if isinstance(DEF[k], int) else float(v) if isinstance(DEF[k], float) else v.replace("+", " ")
    open(out, "w").write(gen(opt))
```

```python
import sys, struct, math

NAME = "gather_scatter__edge_featured_mpnn_egc__graph"
N, E = 50000, 800000
NB, CH, WCH = 256, 3125, 391

DEF = dict(
    LDI="nt",
    K2_X="", K2_E="", K2_O="sc1",
    HS="sc1",
    HL="sc1",
    PRA="01",
    PRB="02",
    STAMP=0,
    SPIN="",
    XPOS=3,
    WPOS=3,
    POLLS=4096,
    TST=0,
    ABL="",
    G1POS=2,
    FORCE="",
    ISS=0,
    SW="23452345",
    NPH=4,
    OWN=1,
    EARLY=1,
    NF0=4,
    DELTA=0.00282,
    T1="258bef",
    EPOS="cl",
    CB=0,
    HM=1,
    XMK=0x7fff80,
    EMK=0x1ffffe0,
)


def f2u(x):
    return struct.unpack("<I", struct.pack("<f", x))[0]


NLOG2E = f2u(-1.4426950408889634)
M32 = -(-(1 << 32) * 128 // 3125)
for d in range(N):
    g = (d * M32) >> 32
    assert g == d * 128 // 3125
    b = (g * 3125 + 127) >> 7
    assert 0 <= d - b < 25


class A:
    def __init__(self):
        self.l = []

    def __call__(self, s):
        for ln in s.split("\n"):
            ln = ln.strip()
            if ln:
                self.l.append(("" if ln.endswith(":") else "    ") + ln)

    def text(self):
        return "\n".join(self.l) + "\n"


def vr(a, n):
    return f"v[{a}:{a + n - 1}]"


def srd(o, d, lo, nrec):
    o(f"s_mov_b32 s{d}, s{lo}")
    o(f"s_and_b32 s{d+1}, s{lo+1}, 0xffff")
    if nrec is not None:
        o(f"s_mov_b32 s{d+2}, {nrec}")
    o(f"s_mov_b32 s{d+3}, 0x20000")


def gen(opt):
    O = dict(DEF)
    O.update(opt)
    BS = NB * 128 + 128
    TOFF = NB * BS
    META = 4096
    KTAG = 0x9E377000
    WSB = 268435456
    fl = lambda k: (" " + O[k]) if O[k] else ""

    o = A()
    SOFF = 200 << 20
    st = [0]

    cnt_ = [0]

    def stamp(keep=False):
        if O["SPIN"]:
            a_, b_ = [int(v) for v in O["SPIN"].split(",")[:2]]
            j = cnt_[0]
            cnt_[0] += 1
            if j in (0, a_, b_):
                o("s_memrealtime s[60:61]")
                o("s_memtime s[62:63]")
                o("s_waitcnt lgkmcnt(0)")
                for k_, w_ in enumerate((0, a_, b_)):
                    if j == w_:
                        o(f"s_mov_b32 s{64+2*k_}, s62")
                        o(f"s_mov_b32 s{65+2*k_}, s60")
            return
        if not O["STAMP"] or (O["STAMP"] == 2 and st[0] > 0 and not keep):
            return
        o("s_memrealtime s[60:61]")
        o("s_memtime s[62:63]")
        o("s_waitcnt lgkmcnt(0)")
        o(f"s_mov_b32 s{64+2*st[0]}, s62")
        o(f"s_mov_b32 s{65+2*st[0]}, s60")
        st[0] += 1
        assert st[0] <= 15

    def xstamp(j):
        if O["SPIN"]:
            keep_ = cnt_[0]
            cnt_[0] = j
            stamp()
            cnt_[0] = keep_

    def stamp_out(srd_, wv, nw, t):
        if O["SPIN"]:
            a_, b_, kind, who = O["SPIN"].split(",")
            o("s_waitcnt vmcnt(0)")
            stamp()
            if kind == "t":
                o("s_sub_u32 s58, s69, s67")
            else:
                o("s_sub_u32 s58, s68, s66")
                o("s_mul_hi_u32 s58, s58, 0x1999999a")
            if who != "all":
                o(f"s_lshl_b32 s59, s2, 3")
                o(f"s_add_u32 s59, s59, s{wv}")
                o(f"s_cmp_eq_u32 s59, {who}")
                o(f"s_cbranch_scc0 K2_END")
            o("s_min_u32 s58, s58, 20000")
            o("s_add_u32 s58, s58, 6000")
            o("K2_SPIN:")
            o("s_sleep 1")
            o("s_memrealtime s[60:61]")
            o("s_waitcnt lgkmcnt(0)")
            o("s_sub_u32 s60, s60, s65")
            o("s_cmp_lt_u32 s60, s58")
            o("s_cbranch_scc1 K2_SPIN")
            return
        if not O["STAMP"]:
            return
        o("s_waitcnt vmcnt(0)")
        stamp(True)
        o(f"s_mul_i32 s58, s2, {nw}")
        o(f"s_add_u32 s58, s58, s{wv}")
        o("s_lshl_b32 s58, s58, 7")
        o(f"s_add_u32 s58, s58, {SOFF}")
        o("s_waitcnt lgkmcnt(0)")
        o("s_mov_b64 exec, 1")
        o(f"v_mov_b32 v{t}, 0")
        rs = [64 + i for i in range(2 * st[0])]
        for i, r in enumerate(rs):
            o(f"v_mov_b32 v{t+1}, s{r}")
            o(f"buffer_store_dword v{t+1}, v{t}, s[{srd_}:{srd_+3}], s58 offen offset:{4*i}")
        o(f"v_mov_b32 v{t+1}, s{S_C}")
        o(f"buffer_store_dword v{t+1}, v{t}, s[{srd_}:{srd_+3}], s58 offen offset:124")
        sys.stderr.write(f"stamps: soff={SOFF} sn={st[0]} nw={nw}\n")

    K2 = NAME + "_kernel"
    SG = 696
    LS, CAPT = 4 * SG, 504
    D1OFF = 8 * LS
    D1O = D1OFF // 256
    XO = lambda b: 32768 if b == 0 else 0
    CNT1, IMG, ISTR = 32768, 33792, 272
    L_D0 = 0x10000
    L_OH = L_D0 + 2 * D1OFF
    L_LUT = L_OH + 16384
    L_CNT = L_LUT + 2048
    L_W = L_CNT + 512
    assert D1OFF % 256 == 0 and L_CNT % 256 == 0 and CAPT * 4 + 768 <= LS and LS % 16 == 0
    assert IMG + 9 * 8192 <= L_OH and (32 + 512) * 4 + 512 <= LS
    K2_LDS = L_W + 34 * 1024
    assert K2_LDS <= 163840
    XR, LP, LD0, LD1, H16, LUTB, OHW, OHR, ONE, ZERO, LOC = 1, 5, 7, 8, 9, 10, 11, 12, 13, 14, 15
    WB, WV, WC, PT, ACC, Z, HV, MSG, X, EC, OHT, OH = 16, 48, 80, 88, 104, 136, 168, 184, 192, 208, 216, 224
    D0, D1, LUTA, OHA, LANE = 232, 236, 237, 238, 239
    F = [240, 244]
    TM = 248
    S_W, S_T, S_MASK, S_BUF, S_TIER, S_FLAG, S_FIRST, S_C, S_K0, S_M32, S_BK, S_EM, S_NL = 3, 24, 25, 26, 28, 29, 30, 31, 32, 33, 34, 35, 36
    S_LB, S_BASE, S_SUB8, S_TAG, S_3125 = 37, 38, 39, 94, 95
    S_G6 = 100
    mf = lambda d, a, b, c: f"v_mfma_f32_32x32x16_bf16 {vr(d,16)}, {vr(a,4)}, {vr(b,4)}, " + (vr(c, 16) if c is not None else "0")
    sp = lambda d, a, b, ix, hi: f"v_smfmac_f32_32x32x32_bf16 {vr(d,16)}, {vr(a,4)}, {vr(b,8)}, v{ix}" + (" abid:1" if hi else "")
    SIX, S_ONE = 220, 44
    pmap = [int(c) for c in O["PRA"]]
    prio = lambda p: o(f"s_setprio {pmap[p]}")

    q = []

    def vw(*tags):
        last = max(i for i, t in enumerate(q) if t in tags)
        return sum(1 for t in q[last + 1:] if t not in ("h", "T"))

    DST = [104, 105, 106, 108, 109, 110, 112]
    SRC = [114, 115, 116, 118, 119, 120, 122]
    G = [124 + i for i in range(7)]
    MT = lambda i: 140 + 2 * i
    RK1 = [154 + i for i in range(7)]
    BK = [161 + i for i in range(7)]
    T0, T1, V1, V127 = 131, 132, 133, 134
    RA, RC, GA, KQ = 135, 136, 137, 138
    FIL, FA, FB = 232, 236, 237
    LOQ = lambda r: 168 + 4 * r
    HIQ = lambda r: 184 + 4 * r
    CN, AC = 200, 204
    WR = 16
    WA, XA = 243, 244
    ZQ = 64

    def fill(lo, hi):
        for r in range(lo, hi):
            o(f"ds_write_b128 v{FA}, {vr(FIL,4)} offset:{8192*r}" if r < 8 else f"ds_write_b128 v{FB}, {vr(FIL,4)}")

    o(f""".globl {K2}
    .p2align 8
    .type {K2},@function
    {K2}:
    s_load_dwordx8 s[40:47], s[0:1], 0
    s_load_dwordx2 s[56:57], s[0:1], 72
    s_load_dwordx8 s[48:55], s[0:1], 32
    s_cmp_ge_u32 s2, {NB}
    s_cbranch_scc1 K2_END
    v_lshrrev_b32 v{TM}, 6, v0
    v_and_b32 v{LANE}, 63, v0
    v_readfirstlane_b32 s{S_W}, v{TM}
    v_lshlrev_b32 v{TM+1}, 4, v0
    s_lshl_b32 s58, s2, 3
    v_lshl_add_u32 v{TM+2}, v0, 1, s58
    v_and_b32 v{FIL}, 62, v{TM+2}
    v_mov_b32 v{FIL+1}, 0
    v_xor_b32 v{FIL+2}, 32, v{FIL}
    v_mov_b32 v{FIL+3}, 0
    v_add_u32 v{FA}, {IMG}, v{TM+1}""")
    fill(0, O["NF0"])
    o(f"""v_mul_u32_u24 v{TM+3}, 12, v{LANE}
    v_lshlrev_b32 v{TM+2}, 2, v{LANE}
    s_mul_i32 s58, s2, {CH*4}
    s_mul_i32 s59, s{S_W}, {WCH*4}
    s_add_u32 s58, s58, s59
    s_mov_b32 s98, {E*4}
    s_mov_b32 s99, 0x20000
    s_mov_b32 s18, {E*4}
    s_mov_b32 s19, 0x20000
    v_add_u32 v{FB}, {IMG+65536}, v{TM+1}
    v_mov_b32 v{ZQ}, 0
    v_mov_b32 v{ZQ+1}, 0
    v_mov_b32 v{ZQ+2}, 0
    v_mov_b32 v{ZQ+3}, 0
    v_lshlrev_b32 v{WA}, 4, v{LANE}
    s_waitcnt lgkmcnt(0)""")
    stamp()
    o("s_mov_b32 s96, s46")
    o("s_and_b32 s97, s47, 0xffff")

    def idx_loads(regs, sr, tag):
        o(f"buffer_load_dwordx3 {vr(regs[0],3)}, v{TM+3}, s[{sr}:{sr+3}], s58 offen{fl('LDI')}")
        o(f"buffer_load_dwordx3 {vr(regs[3],3)}, v{TM+3}, s[{sr}:{sr+3}], s58 offen offset:768{fl('LDI')}")
        o(f"buffer_load_dword v{regs[6]}, v{TM+2}, s[{sr}:{sr+3}], s58 offen offset:1536{fl('LDI')}")
        q.extend([tag + "0", tag + "1", tag + "2"])
    idx_loads(DST, 96, "D")
    o("s_mov_b32 s16, s44")
    o("s_and_b32 s17, s45, 0xffff")
    idx_loads(SRC, 16, "S")
    o(f"s_load_dword s{S_TAG}, s[56:57], 0")
    o(f"ds_write_b128 v{WA}, {vr(ZQ,4)} offset:{CNT1}")
    fill(O["NF0"], 9)
    srd(o, 8, 40, N * 128)
    srd(o, 4, 42, E * 32)
    srd(o, 12, 56, WSB)
    srd(o, 20, 54, None)
    o(f"""s_mov_b32 s40, s52
    s_and_b32 s41, s53, 0xffff
    s_movk_i32 s42, {144*128}
    s_mov_b32 s43, 0x20000
    s_lshl_b32 s{S_T}, s{S_W}, 11
    s_cmp_lt_u32 s{S_W}, 5
    s_cselect_b32 s48, s50, s48
    s_cselect_b32 s49, s51, s49
    s_cselect_b32 s56, 1, 5
    s_sub_u32 s{S_K0}, s{S_W}, s56
    s_movk_i32 s50, 8192
    s_cmp_eq_u32 s{S_W}, 0
    s_cselect_b32 s48, s52, s48
    s_cselect_b32 s49, s53, s49
    s_cselect_b32 s{S_K0}, 8, s{S_K0}
    s_cselect_b32 s50, s42, s50
    s_lshl_b32 s{S_K0}, s{S_K0}, 11
    s_and_b32 s49, s49, 0xffff
    s_mov_b32 s51, 0x20000""")

    def wts():
        o(f"""s_add_u32 m0, s{S_T}, {L_W}
        s_cmp_lg_u32 s{S_W}, 7
        buffer_load_dwordx4 v{WA}, s[40:43], s{S_T} offen lds
        buffer_load_dwordx4 v{WA}, s[40:43], s{S_T} offen offset:1024 lds
        s_add_u32 m0, s{S_T}, {L_W+16384}
        s_cmp_lg_u32 s{S_W}, 7
        buffer_load_dwordx4 v{WA}, s[48:51], s{S_K0} offen lds
        buffer_load_dwordx4 v{WA}, s[48:51], s{S_K0} offen offset:1024 lds
        s_cbranch_scc1 K2_W3
        buffer_load_dwordx4 v{WA}, s[48:51], s{S_K0} offen offset:2048 lds
        buffer_load_dwordx4 v{WA}, s[48:51], s{S_K0} offen offset:3072 lds
        K2_W3:""")
        q.extend(["W"] * 4)

    def nodebase(sub):
        o(f"""s_lshl_b32 s{S_BASE}, s{S_BK}, 3
        s_add_u32 s{S_BASE}, s{S_BASE}, s{sub}
        s_mul_i32 s{S_BASE}, s{S_BASE}, 3125
        s_add_u32 s22, s{S_BASE}, {3125+127}
        s_add_u32 s{S_BASE}, s{S_BASE}, 127
        s_and_b32 s{S_BASE}, s{S_BASE}, -128
        s_and_b32 s22, s22, -128""")

    def side(pos):
        if O["WPOS"] == pos:
            wts()
        if O["XPOS"] == pos:
            o(f"s_mov_b32 m0, s{S_BUF+1}")
            o("s_nop 0")
            for s in range(4):
                o(f"buffer_load_dwordx4 v{XA+(s&1)}, s[8:11], s{S_BASE} offen offset:{s*1024} lds")
            q.extend(['X'] * 4)
    o(f"""s_mov_b32 s{S_M32}, {M32}
    s_movk_i32 s{S_3125}, 3125
    s_cmp_eq_u32 s{S_W}, 7
    s_cselect_b32 s{S_G6}, 15, 0x7f
    s_mov_b32 s{S_G6+1}, 0
    s_mul_i32 s59, s{S_W}, {WCH}
    v_mov_b32 v{V1}, 1
    v_mov_b32 v{V127}, 127
    s_mov_b32 s{S_TIER}, 0
    s_movk_i32 s52, 1342
    s_mov_b32 s54, 0x800000
    s_movk_i32 s55, {ISTR//4}
    s_waitcnt lgkmcnt(0)
    s_barrier""")
    stamp()
    o(f"""s_add_u32 s{S_TAG}, s{S_TAG}, {KTAG:#x}
    s_and_b32 s{S_TAG}, s{S_TAG}, 0xfffff000
    v_mad_u32_u24 v{MT(0)+1}, v{LANE}, 3, s59
    v_add_u32 v{MT(6)+1}, s59, v{LANE}""")
    for i in range(1, 6):
        o(f"v_add_u32 v{MT(i)+1}, {(i//3)*192+i%3}, v{MT(0)+1}")
    o(f"""v_add_u32 v{MT(6)+1}, 384, v{MT(6)+1}
    v_lshrrev_b32 v{TM+2}, 3, v0
    v_and_b32 v{TM+4}, 0x70, v{TM+1}
    v_lshlrev_b32 v{RC}, 2, v{TM+2}
    v_mul_u32_u24 v{RA}, {ISTR}, v{TM+2}
    v_add3_u32 v{RA}, v{RA}, v{TM+4}, v{FA}
    v_sub_u32 v{RA}, v{RA}, v{TM+1}
    v_mul_u32_u24 v{GA}, {BS}, v{TM+2}
    v_add_u32 v{GA}, v{GA}, v{TM+4}
    v_lshrrev_b32 v{KQ}, 3, v{TM+4}
    v_add_u32 v{KQ}, 16, v{KQ}
    s_lshl_b32 s57, s2, 7
    s_add_u32 s57, s57, {META}
    s_and_b32 s{S_BK}, s2, 7
    s_lshl_b32 s{S_BK}, s{S_BK}, 5
    s_lshr_b32 s58, s2, 3
    s_or_b32 s{S_BK}, s{S_BK}, s58""")
    nodebase(S_W)
    o(f"""v_lshrrev_b32 v{TM+2}, 4, v{LANE}
    v_xor_b32 v{TM+2}, v{TM+2}, v{LANE}
    v_and_b32 v{TM+2}, 7, v{TM+2}
    v_lshlrev_b32 v{LP}, 4, v{TM+2}
    v_xor_b32 v{LP+1}, 64, v{LP}
    v_lshrrev_b32 v{TM+3}, 3, v{LANE}
    s_lshl_b32 s{S_BUF+1}, s{S_W}, 12
    s_add_u32 s{S_BUF}, s{S_BUF+1}, 0x8000
    v_lshl_add_u32 v{XA}, v{TM+3}, 7, v{LP}
    v_lshl_add_u32 v{XA+1}, v{TM+3}, 7, v{LP+1}""")
    ob = L_OH - IMG - 65536
    o(f"""ds_write_b128 v{FB}, {vr(ZQ,4)} offset:{ob}
    ds_write_b128 v{FB}, {vr(ZQ,4)} offset:{ob+8192}
    s_cmp_ge_u32 s{S_W}, 2
    s_cbranch_scc1 K2_Z
    ds_write_b128 v{FB}, {vr(ZQ,4)} offset:{ob+16384}
    K2_Z:
    s_cmp_lg_u32 s{S_W}, 2
    s_cbranch_scc1 K2_Z2
    v_cmp_lt_u32 vcc, 31, v{LANE}
    v_mul_u32_u24 v{TM+5}, {SG}, v{LANE}
    v_add_u32 v{TM+5}, {L_D0-32*SG}, v{TM+5}
    v_bfrev_b32 v{TM+2}, 2
    v_cndmask_b32 v{TM+2}, v{TM+2}, v{TM+5}, vcc
    v_lshlrev_b32 v{TM+4}, 2, v{LANE}
    v_add_u32 v{TM+4}, {L_CNT}, v{TM+4}
    ds_write2st64_b32 v{TM+4}, v{TM+2}, v{TM+2} offset0:0 offset1:1
    K2_Z2:""")
    side(1)
    for i in range(7):
        if i in (0, 3, 6):
            o(f"s_waitcnt vmcnt({vw(f'D{i//3}')})")
            if i == 0:
                stamp()
        o(f"v_mul_hi_u32 v{G[i]}, v{DST[i]}, s{S_M32}")
        o(f"v_lshrrev_b32 v{BK[i]}, 1, v{G[i]}")
        o(f"v_and_b32 v{BK[i]}, 0x3fc, v{BK[i]}")
        if i == 6:
            o(f"s_mov_b64 exec, s[{S_G6}:{S_G6+1}]")
        o(f"ds_add_rtn_u32 v{RK1[i]}, v{BK[i]}, v{V1} offset:{CNT1}")
        if i == 6:
            o("s_mov_b64 exec, -1")
    side(2)
    for i in range(7):
        o(f"v_mad_u32_u24 v{T0}, v{G[i]}, s{S_3125}, v{V127}")
        o(f"v_lshrrev_b32 v{T0}, 7, v{T0}")
        o(f"v_sub_u32 v{T0}, v{DST[i]}, v{T0}")
        o(f"v_and_b32 v{T1}, 7, v{G[i]}")
        o(f"v_lshl_or_b32 v{T1}, v{T1}, 3, 64")
        o(f"v_lshl_or_b32 v{MT(i)}, v{T0}, 27, v{T1}")
        o(f"v_and_b32 v{DST[i]}, {0x700 if O['OWN'] else 0}, v{G[i]}")
        o(f"v_mul_i32_i24 v{DST[i]}, {(-(1 << 15)) & 0xffffffff:#x}, v{DST[i]}")
        o(f"v_mul_u32_u24 v{BK[i]}, s55, v{BK[i]}")

    def img_write(i):
        o(f"v_min_u32 v{G[i]}, 32, v{RK1[i]}")
        o(f"v_lshl_add_u32 v{G[i]}, v{G[i]}, 3, v{BK[i]}")
        if i == 6:
            o(f"s_mov_b64 exec, s[{S_G6}:{S_G6+1}]")
        o(f"ds_write_b64 v{G[i]}, {vr(MT(i),2)} offset:{IMG}")
        if i == 6:
            o("s_mov_b64 exec, -1")
    for i in range(7):
        w = f"vmcnt({vw(f'S{i//3}')}) " if i in (0, 3, 6) else ""
        o(f"s_waitcnt {w}lgkmcnt(6)")
        o(f"v_mad_u32_u24 v{T0}, v{SRC[i]}, s52, v{DST[i]}")
        o(f"v_lshl_or_b32 v{MT(i)}, v{SRC[i]}, 7, v{MT(i)}")
        o(f"v_lshrrev_b32 v{T0}, 23, v{T0}")
        if O["NPH"] != 4:
            o(f"v_bfi_b32 v{T0}, {4 if O['NPH'] == 2 else 0}, v{T0}, v{SRC[i]}")
        o(f"v_and_or_b32 v{MT(i)}, v{T0}, 6, v{MT(i)}")
        img_write(i)
    side(3)
    o("""K2_PASS:
    s_waitcnt lgkmcnt(0)
    s_barrier""")
    stamp()
    for r in range(4):
        o(f"ds_read_b32 v{CN+r}, v{RC} offset:{CNT1+256*r}")
        o(f"ds_read_b128 {vr(HIQ(r),4)}, v{RA} offset:{64*ISTR*r+128}")
        o(f"ds_read_b128 {vr(LOQ(r),4)}, v{RA} offset:{64*ISTR*r}")
    o(f"ds_read_b128 {vr(AC,4)}, v{WA} offset:{CNT1}")
    for r in range(4):
        lo, hi = LOQ(r), HIQ(r)
        o(f"""s_add_u32 s44, s57, {TOFF+64*BS*r}
        s_add_u32 s56, s57, {64*BS*r}
        s_waitcnt lgkmcnt({11-3*r})
        v_sub_u32 v{CN+r}, v{KQ}, v{CN+r}
        v_or_b32 v{hi+1}, s{S_TAG}, v{hi+1}
        {f"v_bitop3_b32 v{T1}, v{GA}, v{CN+r}, 2.0 bitop3:0xf2" if O["HM"] else f"v_cmp_gt_i32 vcc, 0, v{CN+r}"}
        v_add_u32 v{T0}, 16, v{CN+r}
        v_or_b32 v{hi+3}, s{S_TAG}, v{hi+3}
        v_and_or_b32 v{hi}, v{T0}, s54, v{hi}
        {"" if O["HM"] else "s_mov_b64 exec, vcc"}
        buffer_store_dwordx4 {vr(hi,4)}, v{T1 if O["HM"] else GA}, s[12:15], s44 offen{fl('HS')}
        {"" if O["HM"] else "s_mov_b64 exec, -1"}
        s_waitcnt lgkmcnt({10-3*r})
        v_and_or_b32 v{lo}, v{CN+r}, s54, v{lo}
        v_or_b32 v{lo+1}, s{S_TAG}, v{lo+1}
        v_or_b32 v{lo+3}, s{S_TAG}, v{lo+3}
        buffer_store_dwordx4 {vr(lo,4)}, v{GA}, s[12:15], s56 offen{fl('HS')}""")
        q.extend(["H" if O["HM"] else "h", "H"])
    o(f"""s_waitcnt lgkmcnt(0)
    v_max_u32 v{AC}, v{AC}, v{AC+1}
    v_max3_u32 v{AC}, v{AC}, v{AC+2}, v{AC+3}
    v_cmp_lt_u32 vcc, 32, v{AC}
    s_cbranch_vccnz K2_P2
    K2_P2R:""")
    stamp()
    LQ = lambda j: Z + 4 * j
    TQ = lambda j: Z + 16 + 4 * j
    CA, RK = ACC, ACC + 16
    CB, LA, VA, V4, CNB = X, X + 4, X + 5, X + 6, X + 7
    KI, KJ = X + 8, X + 12
    KJA, CII, CIJ, SHV, PA, PB, PC = 80, 81, 82, 83, 84, 85, 86
    KIA, L4, EXA = TM + 5, TM + 7, TM + 1
    MK = lambda j: 42 + 2 * j
    o(f"""v_and_b32 v{TM+2}, 31, v{LANE}
    v_lshrrev_b32 v{TM+4}, 5, v{LANE}
    s_add_u32 s47, s{S_T}, {L_W}
    v_lshlrev_b32 v{TM+6}, 2, v{TM+2}
    v_lshl_add_u32 v{TM+6}, v{TM+4}, 10, v{TM+6}
    v_add_u32 v{TM+6}, s47, v{TM+6}
    v_add_u32 v{TM+3}, 0x4000, v{TM+6}
    s_waitcnt vmcnt({vw('W')})""")
    xstamp(20)

    def wread(raw, a, off):
        for j in range(4):
            o(f"ds_read2_b32 {vr(raw+2*j,2)}, v{a} offset0:{off+64*j} offset1:{off+64*j+32}")

    def wconv(raw, sc, off):
        t = 40
        for j in range(8):
            o(f"v_lshlrev_b32 v{t+j}, 16, v{raw+j}")
            o(f"v_and_b32 v{t+8+j}, 0xffff0000, v{raw+j}")
        if sc is not None:
            for j in range(16):
                o(f"v_mul_f32 v{t+j}, s{sc}, v{t+j}")
        for j in range(4):
            o(f"v_cvt_pk_bf16_f32 v{raw+j}, v{t+2*j}, v{t+2*j+1}")
            o(f"v_cvt_pk_bf16_f32 v{raw+4+j}, v{t+8+2*j}, v{t+8+2*j+1}")
        o(f"ds_write_b128 v{TM+1}, {vr(raw,4)} offset:{off}")
        o(f"ds_write_b128 v{TM+1}, {vr(raw+4,4)} offset:{off+1024}")
    wread(WR, TM + 6, 0)
    wread(WR + 8, TM + 3, 0)
    o(f"""s_mov_b32 s{S_NL}, {NLOG2E:#x}
    s_mov_b32 s44, 1.0
    s_cmp_ge_u32 s{S_W}, 4
    s_cselect_b32 s45, s{S_NL}, s44
    s_cmp_eq_u32 s{S_W}, 0
    s_cselect_b32 s46, s{S_NL}, s44
    v_add_u32 v{TM+1}, s47, v{WA}
    v_add_u32 v{TM}, {L_W}, v{WA}
    v_lshlrev_b32 v{H16}, 4, v{TM+4}
    v_bfe_u32 v{TM+5}, v{TM+2}, 1, 3
    v_xor_b32 v{TM+5}, v{TM+5}, v{TM+4}
    v_lshlrev_b32 v{TM+5}, 4, v{TM+5}
    v_lshl_add_u32 v{TM+5}, v{TM+2}, 7, v{TM+5}
    v_add_u32 v{XR}, s{S_BUF+1}, v{TM+5}
    v_xor_b32 v{XR+1}, 32, v{XR}
    v_xor_b32 v{XR+2}, 64, v{XR}
    v_xor_b32 v{XR+3}, 0x60, v{XR}
    v_lshlrev_b32 v{LA}, 4, v0
    s_mul_i32 s50, s{S_BK}, {BS}
    s_add_u32 s50, s50, {META}
    s_add_u32 s51, s50, 8192
    s_add_u32 s52, s50, 16384
    s_add_u32 s53, s50, 24576""")
    o("s_waitcnt lgkmcnt(4)")
    wconv(WR, 45, 0)
    o("s_waitcnt lgkmcnt(2)")
    wconv(WR + 8, 46, 16384)
    o(f"""s_cmp_lg_u32 s{S_W}, 7
    s_cbranch_scc1 K2_W4
    v_add_u32 v{TM+3}, 0x800, v{TM+3}""")
    wread(WR + 16, TM + 3, 0)
    o("s_waitcnt lgkmcnt(0)")
    wconv(WR + 16, None, 16384 + 2048)
    o("K2_W4:")

    def tabs():
        o(f"""v_lshlrev_b32 v{LUTB}, 10, v{TM+4}
        s_lshl_b32 s45, s{S_W}, 11
        s_add_u32 s45, s45, {L_OH}
        v_lshl_add_u32 v{OHR}, v{TM+2}, 4, v{LUTB}
        v_add_u32 v{OHR}, s45, v{OHR}
        v_add_u32 v{LUTB}, {L_LUT}, v{LUTB}
        v_bfe_u32 v{TM+5}, v{TM+2}, 3, 1
        v_lshlrev_b32 v{OHW}, 10, v{TM+5}
        v_lshrrev_b32 v{TM+4}, 4, v{TM+2}
        v_lshl_add_u32 v{OHW}, v{TM+4}, 9, v{OHW}
        v_and_b32 v{TM+6}, 7, v{TM+2}
        v_lshl_add_u32 v{OHW}, v{TM+6}, 1, v{OHW}
        v_add_u32 v{OHW}, s45, v{OHW}
        v_lshlrev_b32 v{OHA}, 10, v{TM+4}
        v_lshl_add_u32 v{OHA}, v{TM+2}, 4, v{OHA}
        v_add_u32 v{OHA}, {L_LUT}, v{OHA}
        v_and_b32 v{TM+4}, 4, v{TM+2}
        v_lshlrev_b32 v{TM+5}, 2, v{TM+5}
        v_lshl_add_u32 v{TM+5}, v{TM+4}, 1, v{TM+5}
        v_and_b32 v{TM+4}, 3, v{TM+2}
        v_lshlrev_b32 v{TM+4}, v{TM+5}, v{TM+4}
        v_add_u32 v{TM+5}, v{OHA}, v{TM+5}
        v_mov_b32 v{ONE}, 0x3f80
        ds_write_b16 v{OHA}, v{TM+4} offset:14
        ds_write_b16 v{TM+5}, v{ONE}""")
    if O["CB"] == 0:
        tabs()
    xstamp(21)
    if O["SPIN"]:
        o(f"s_waitcnt vmcnt({vw('X')})")
    xstamp(22)
    o(f"s_waitcnt vmcnt(0) lgkmcnt(0)")
    xstamp(23)
    o("s_barrier")
    stamp()

    def polls():
        for j in range(4):
            o(f"buffer_load_dwordx4 {vr(LQ(j),4)}, v{LA}, s[12:15], s{50+j} offen{fl('HL')}")
    polls()
    q.extend(["L"] * 4)
    XI, FA_, FU_, ZI = Z + 16, 16, 48, [168, 208]
    for ks in range(4):
        o(f"ds_read_b128 {vr(XI+4*ks,4)}, v{XR+ks} offset:{XO(1)}")
        for nt in range(2):
            o(f"ds_read_b128 {vr(FA_+8*ks+4*nt,4)}, v{TM} offset:{(2*ks+nt)*1024}")
    for f in range(8):
        o(f"ds_read_b128 {vr(FU_+4*f,4)}, v{TM} offset:{(26+f)*1024}")

    def ldparts():
        o(f"""v_lshrrev_b32 v{LD0}, 3, v{LANE}
        v_and_b32 v{LD1}, 3, v{LD0}
        v_lshlrev_b32 v{LD0}, 4, v{LD0}
        v_lshlrev_b32 v{L4}, 2, v{LANE}
        v_lshl_or_b32 v{LD1}, v{LANE}, 2, v{LD1}
        v_and_b32 v{LD1}, 31, v{LD1}
        v_lshlrev_b32 v{LD1}, 2, v{LD1}""")
    ck = (1 - 8 * LS) & 0xffffffff
    fillers = f"""v_mov_b32 v{ZERO}, 0
    s_mov_b32 s{S_MASK}, {O['XMK']:#x}
    s_mov_b32 s{S_FIRST}, 1
    s_mov_b32 s{S_EM}, {O['EMK']:#x}
    s_movk_i32 s{S_C}, {O['POLLS']}
    v_add_u32 v{EXA}, s{S_BUF+1}, v{WA}
    v_lshrrev_b32 v{CB}, 3, v0
    s_lshl_b32 s58, s{S_TAG}, 5
    v_mul_u32_u24 v{CB}, {CH*32}, v{CB}
    v_subrev_u32 v{CB}, s58, v{CB}
    v_mov_b32 v{V4}, 4
    v_mov_b32 v{CNB}, {L_CNT}
    v_lshrrev_b32 v{CII}, 3, v{LANE}
    v_and_b32 v{SHV}, 7, v{LANE}
    v_lshl_add_u32 v{KJA}, v{SHV}, 4, v{CNB}
    v_mul_i32_i24 v{CII}, {ck:#x}, v{CII}
    v_mul_i32_i24 v{CIJ}, {ck:#x}, v{SHV}
    v_lshlrev_b32 v{SHV}, 3, v{SHV}
    s_mov_b32 s56, {L_D0+D1OFF-4}
    s_movk_i32 s57, 0xfff
    s_movk_i32 s40, 127
    s_sub_u32 s41, 11, s{S_W}
    s_cmp_lt_u32 s{S_W}, 4
    s_cselect_b32 s41, s{S_W}, s41
    v_add_u32 v{CB+1}, {64*CH*32}, v{CB}
    v_add_u32 v{CB+2}, {64*CH*32*2}, v{CB}
    v_add_u32 v{CB+3}, {64*CH*32*3}, v{CB}
    v_mov_b32 v{D1}, {f2u(-math.log2(1 + O['DELTA'])):#x}""".split("\n")
    ldparts()
    for ks in range(4):
        if ks in (0, 2):
            o(f"s_waitcnt lgkmcnt({14 if ks == 0 else 8})")
        for nt in range(2):
            o(mf(ZI[nt], XI + 4 * ks, FA_ + 8 * ks + 4 * nt, None if ks == 0 else ZI[nt]))
            for _ in range(4):
                if fillers:
                    o(fillers.pop(0))
    assert not fillers
    post = []
    for nt in range(2):
        post += [f"v_fma_f32 v{ZI[nt]+i}, v{ZI[nt]+i}, s{S_NL}, v{D1}" for i in range(16)]
        post += [f"v_cvt_pk_bf16_f32 v{PT+8*nt+k}, v{ZI[nt]+2*k}, v{ZI[nt]+2*k+1}" for k in range(8)]
        post += [f"ds_write_b128 v{EXA}, {vr(PT+8*nt+4*k,4)} offset:{2048*nt+1024*k}" for k in range(2)]
    for ks in range(4):
        if ks in (0, 2):
            o(f"s_waitcnt lgkmcnt({4 if ks == 0 else 0})")
        for nt in range(2):
            o(mf(ACC + 16 * nt, XI + 4 * ks, FU_ + 8 * ks + 4 * nt, None if ks == 0 else ACC + 16 * nt))
            if ks == 1 and nt == 1:
                o("s_nop 7")
            if ks >= 2:
                for _ in range(6):
                    o(post.pop(0))
    for p_ in post:
        o(p_)
    for nt in range(2):
        for k in range(7):
            o(f"v_cvt_pk_bf16_f32 v{ACC+16*nt+k}, v{ACC+16*nt+2*k}, v{ACC+16*nt+2*k+1}")
        for k in range(2):
            o(f"ds_write_b128 v{EXA}, {vr(ACC+16*nt+4*k,4)} offset:{32768+2048*nt+1024*k}")
    if O["CB"] == 1:
        tabs()
    o(f"v_add_u32 v{KIA}, {L_CNT+128}, v{LD0}")
    if O["FORCE"] == "T":
        o(f"s_cmp_eq_u32 s2, 77")
        o(f"s_cselect_b32 s58, 0x1000, 0")
        o(f"s_xor_b32 s{S_TAG}, s{S_TAG}, s58")
    o(f"s_waitcnt vmcnt({vw('L')})")
    stamp()
    o("K2_PV:")
    for j in range(4):
        o(f"v_bitop3_b32 v{CA+j}, v{LQ(j)+1}, v{LQ(j)+3}, s{S_TAG} bitop3:0x7e")
    o(f"""v_or3_b32 v{CA}, v{CA}, v{CA+1}, v{CA+2}
    v_or_b32 v{CA}, v{CA}, v{CA+3}
    v_cmp_lt_u32 vcc, s57, v{CA}
    s_cbranch_vccnz K2_PR
    s_mov_b64 exec, -1""")
    for j in range(4):
        o(f"v_cmp_lt_u32_sdwa s[{MK(j)}:{MK(j)+1}], s40, v{LQ(j)} src0_sel:DWORD src1_sel:BYTE_2")
        o(f"s_add_u32 s{50+j}, s{50+j}, {TOFF}")

    def tloads():
        for j in range(4):
            o(f"s_mov_b64 exec, s[{MK(j)}:{MK(j)+1}]")
            o(f"buffer_load_dwordx4 {vr(TQ(j),4)}, v{LA}, s[12:15], s{50+j} offen{fl('HL')}")
        o("s_mov_b64 exec, -1")
    tloads()
    q.extend(["T"] * 4)

    def atom(m, i):
        o(f"v_bfe_u32 v{CA+i}, v{m}, 1, 6")
        o(f"v_lshl_add_u32 v{CA+i}, v{CA+i}, 2, v{CNB}")
        o(f"ds_add_rtn_u32 v{RK+i}, v{CA+i}, v{V4}")

    def wr(m, i):
        o(f"v_min_u32 v{RK+i}, s56, v{RK+i}")
        o(f"ds_write2st64_b32 v{RK+i}, v{m}, v{m+1} offset0:0 offset1:{D1O}")
    for i in range(8):
        atom(Z + 2 * i, i)
    for i in range(8):
        o(f"v_lshl_add_u32 v{Z+2*i+1}, v{Z+2*i+1}, 5, v{CB+i//2}")
    for i in range(8):
        o("s_waitcnt lgkmcnt(7)")
        wr(Z + 2 * i, i)
    o("K2_X7:")
    o("""s_waitcnt lgkmcnt(0)
    s_barrier""")
    stamp()

    def group(d0, d1, buf, ed=None):
        ins = []
        for s in range(4):
            ins.append(f"v_and_or_b32 v{d0+s}, v{d0+s}, s{S_MASK}, v{LP+(s&1)}")
        ins.append(f"v_and_or_b32 v{d1}, v{d1}, s{S_EM}, v{H16}")
        mem = []
        for s in range(4):
            m = f"s_mov_b32 m0, s{S_BUF+buf}" if s == 0 else "s_add_u32 m0, m0, 1024"
            mem.append((m, f"buffer_load_dwordx4 v{d0+s}, s[8:11], 0 offen lds{fl('K2_X')}"))
        e = f"buffer_load_dwordx4 {vr(F[buf] if ed is None else ed,4)}, v{d1}, s[4:7], 0 offen{fl('K2_E')}"
        return ins, mem, e

    def emit_group(d0, d1, buf, withe=True, ed=None, wait=""):
        ins, mem, e = group(d0, d1, buf, ed)
        for x_ in ins[:5 if withe else 4]:
            o(x_)
        o(wait)
        for m, l in mem:
            o(m)
            o("s_nop 0")
            o(l)
        if withe:
            o(e)

    o(f"""ds_read_b128 {vr(KI,4)}, v{KIA}
    ds_read_b128 {vr(KJ,4)}, v{KJA} offset:128
    s_or_b32 s58, s2, s{S_W}
    s_cbranch_scc0 K2_EP
    K2_EPR:
    s_waitcnt lgkmcnt(0)
    s_barrier
    v_add3_u32 v{PA}, v{KI}, v{KI+1}, v{KI+2}
    v_add3_u32 v{PB}, v{KJ}, v{KJ+1}, v{KJ+2}
    v_add_u32 v{PA}, v{PA}, v{KI+3}
    v_add_u32 v{PB}, v{PB}, v{KJ+3}
    v_lshl_add_u32 v{PA}, v{PA}, 1, v{CII}
    v_lshl_add_u32 v{PB}, v{PB}, 1, v{CIJ}
    v_cmp_gt_u32 vcc, v{PB}, v{PA}
    s_nop 1
    v_lshrrev_b64 {vr(PC,2)}, v{SHV}, vcc
    v_and_b32 v{PC}, 0xff, v{PC}
    v_bcnt_u32_b32 v{PC}, v{PC}, 0
    v_cmp_eq_u32 vcc, s41, v{PC}
    s_nop 0
    s_ff1_i32_b32 s54, vcc_lo
    s_mul_i32 s{S_LB}, s54, {LS}
    s_add_u32 s{S_LB}, s{S_LB}, {L_D0}
    v_add_u32 v{LD0}, s{S_LB}, v{LD0}
    v_add_u32 v{LD1}, s{S_LB}, v{LD1}
    ds_read_b128 {vr(D0,4)}, v{LD0}
    ds_read_b32 v{D1}, v{LD1} offset:{D1OFF}
s_xor_b32 s58, s54, s{S_W}
    s_lshl_b32 s58, s58, 12
    v_xor_b32 v{EXA}, s58, v{EXA}
    s_lshl_b32 s{S_SUB8}, s54, 3""")
    AP = 168
    for k in range(4):
        o(f"ds_read_b128 {vr(AP+4*k,4)}, v{EXA} offset:{32768+1024*k}")
    o(f"""v_readlane_b32 s55, v{KI}, s{S_SUB8}
    s_xor_b32 s{S_BUF}, s{S_BUF}, s58
    s_xor_b32 s{S_BUF+1}, s{S_BUF+1}, s58""")
    nodebase(54)
    o(f"""s_add_u32 s59, s{S_LB}, 128
    s_cmp_lt_u32 s55, s59
    s_cselect_b32 s{S_FLAG}, 1, {1 if (O['FORCE'] == 'R' or not O['EARLY']) else 0}""")
    if O["EARLY"]:
        o("s_waitcnt lgkmcnt(4)")
        emit_group(D0, D1, 0, wait="s_waitcnt lgkmcnt(0)")
        q.extend(["G"] * 5)
    stamp()
    for k in range(4):
        o(f"ds_read_b128 {vr(PT+4*k,4)}, v{EXA} offset:{1024*k}")

    def wfr():
        for f in range(2):
            o(f"ds_read_b128 {vr(WC+4*f,4)}, v{TM} offset:{(16+f)*1024}")
        for f in range(8):
            o(f"ds_read_b128 {vr(WB+4*f,4)}, v{TM} offset:{(8+f)*1024}")
        for f in range(8):
            o(f"ds_read_b128 {vr(WV+4*f,4)}, v{TM} offset:{(18+f)*1024}")
    wfr()
    for k in range(4):
        o(f"v_xor_b32 v{XR+k}, s58, v{XR+k}")
    SA = [ACC, ACC + 1, ACC + 2]
    C32, LIM, MS, SE0, SE1 = ACC + 3, ACC + 4, ACC + 5, ACC + 6, ACC + 7
    FL, CV = ACC + 16, ACC + 17
    CD = Z
    o(f"""v_add_u32 v{SA[0]}, s{S_LB}, v{L4}
    v_add_u32 v{SA[1]}, {2*SG}, v{SA[0]}
    v_add_u32 v{SA[2]}, {3*SG}, v{SA[0]}
    v_add_u32 v{SA[0]}, {SG}, v{SA[0]}
    v_add_u32 v{C32}, v{CNB}, v{L4}
    v_mul_u32_u24 v{LIM}, {SG}, v{LANE}
    v_add_u32 v{LIM}, {L_D0-31*SG}, v{LIM}
    v_lshrrev_b32 v{MS}, 3, v{LANE}
    v_mul_u32_u24 v{MS}, {4*LS}, v{MS}
    v_add_u32 v{MS}, {4*L_D0+6*SG+4*CAPT}, v{MS}
    v_mov_b32 v{SE0}, 0xf87fff80
    v_mov_b32 v{SE1}, 0x1ffffe0""")
    o(f"s_waitcnt vmcnt({vw('T')})")
    stamp()
    o("K2_TV:")
    o(f"v_mov_b32 v{VA}, 0")
    for j in range(4):
        o(f"v_bitop3_b32 v{CA+8+j}, v{TQ(j)+1}, v{TQ(j)+3}, s{S_TAG} bitop3:0x7e")
    for j in range(4):
        o(f"v_cndmask_b32 v{CA+8+j}, 0, v{CA+8+j}, s[{MK(j)}:{MK(j)+1}]")
    o(f"""v_or3_b32 v{CA+8}, v{CA+8}, v{CA+9}, v{CA+10}
    v_or_b32 v{CA+8}, v{CA+8}, v{CA+11}
    v_cmp_lt_u32 vcc, s57, v{CA+8}
    s_cbranch_vccnz K2_TR""")
    for j in range(4):
        o(f"s_mov_b64 exec, s[{MK(j)}:{MK(j)+1}]")
        atom(TQ(j), 8 + 2 * j)
        atom(TQ(j) + 2, 9 + 2 * j)
        o(f"v_or_b32 v{VA}, v{VA}, v{TQ(j)}")
    o("s_mov_b64 exec, -1")
    for i in range(8, 16):
        o(f"v_lshl_add_u32 v{Z+2*i+1}, v{Z+2*i+1}, 5, v{CB+(i-8)//2}")
    o(f"v_cmp_lt_u32_sdwa vcc, s40, v{VA} src0_sel:DWORD src1_sel:BYTE_2")
    o("s_waitcnt lgkmcnt(0)")
    for j in range(4):
        o(f"s_mov_b64 exec, s[{MK(j)}:{MK(j)+1}]")
        wr(TQ(j), 8 + 2 * j)
        wr(TQ(j) + 2, 9 + 2 * j)
    o("s_mov_b64 exec, -1")
    o("s_cbranch_vccnz K2_TN")
    o("K2_B3:")
    o("s_waitcnt lgkmcnt(0)")
    o("s_barrier")
    stamp()
    G1 = TM
    o(f"""ds_read_b128 {vr(KI,4)}, v{KIA}
    ds_read_b32 v{CV}, v{C32}
    ds_read_b32 v{FL}, v{CNB} offset:256""")
    for p in range(3):
        for k in range(3):
            o(f"ds_read2st64_b32 {vr(CD+6*p+2*k,2)}, v{SA[p]} offset0:{k} offset1:{D1O+k}")
    o(f"""s_mov_b32 s{S_K0}, {E}
    s_add_u32 s46, s{S_LB}, {SG}
    s_add_u32 s47, s{S_LB}, {2*SG}
    s_add_u32 s48, s{S_LB}, {3*SG}
    s_waitcnt lgkmcnt(9)
    v_readlane_b32 s40, v{KI}, s{S_SUB8}
    v_readlane_b32 s41, v{KI+1}, s{S_SUB8}
    v_readlane_b32 s42, v{KI+2}, s{S_SUB8}
    v_readlane_b32 s43, v{KI+3}, s{S_SUB8}
    v_readfirstlane_b32 s49, v{FL}
    v_add3_u32 v{KI}, v{KI}, v{KI+1}, v{KI+2}
    v_cmp_lt_u32 s[50:51], v{LIM}, v{CV}
    v_add_u32 v{KI}, v{KI}, v{KI+3}
    v_cmp_lt_u32 vcc, v{MS}, v{KI}
    s_sub_u32 s44, s41, s46
    s_add_u32 s44, s44, s40
    s_sub_u32 s45, s42, s47
    s_add_u32 s45, s45, s44
    s_sub_u32 s{S_T}, s43, s48
    s_add_u32 s{S_T}, s{S_T}, s45
    v_add_u32 v{SA[0]}, s40, v{L4}
    v_add_u32 v{SA[1]}, s44, v{L4}
    v_add_u32 v{SA[2]}, s45, v{L4}
    s_cbranch_vccnz K2_FB
    s_cmp_lg_u32 s51, 0
    s_cbranch_scc1 K2_FB
    s_bitcmp0_b32 s49, 30
    s_cbranch_scc1 K2_FB
    s_waitcnt lgkmcnt(0)""")
    for p in range(3):
        for k in range(3):
            o(f"ds_write2st64_b32 v{SA[p]}, v{CD+6*p+2*k}, v{CD+6*p+2*k+1} offset0:{k} offset1:{D1O+k}")
    o(f"""K2_R1:
    v_add_u32 v{SA[0]}, s{S_T}, v{L4}
    s_sub_u32 s{S_T}, s{S_T}, s{S_LB}
    s_add_u32 s{S_T}, s{S_T}, 127
    s_lshr_b32 s{S_T}, s{S_T}, 7
    ds_write2st64_b32 v{SA[0]}, v{SE0}, v{SE1} offset0:0 offset1:{D1O}
    ds_write2st64_b32 v{SA[0]}, v{SE0}, v{SE1} offset0:1 offset1:{D1O+1}
    s_cmp_lg_u32 s{S_FLAG}, 0
    s_cbranch_scc1 K2_G0
    K2_G0R:
    ds_read_b128 {vr(G1,4)}, v{LD0} offset:128
    ds_read_b32 v{G1+4}, v{LD1} offset:{D1OFF+128}
    ds_read_u8 v{LOC}, v{LD1} offset:3""")
    g1 = lambda: emit_group(G1, G1 + 4, 1, True, 188 if O["EPOS"][0] == "c" and O["ISS"] < 2 else None)
    if O["G1POS"] == 0:
        o("s_waitcnt lgkmcnt(0)")
        g1()
    o(f"""s_cmp_eq_u32 s{S_FIRST}, 0
    s_cbranch_scc1 K2_R2
    s_mov_b32 s{S_FIRST}, 0""")
    for nt in range(2):
        for k in range(7):
            o(f"v_lshlrev_b32 v{ACC+16*nt+2*k}, 16, v{AP+8*nt+k}")
            o(f"v_and_b32 v{ACC+16*nt+2*k+1}, 0xffff0000, v{AP+8*nt+k}")
    o(f"""K2_R2:
    s_waitcnt lgkmcnt(0)
    v_lshl_add_u32 v{LUTA}, v{LOC}, 1, v{LUTB}
    v_lshl_add_u32 v{OHA}, v{LOC}, 1, v{OHW}""")
    if O["G1POS"] == 2:
        g1()
    o(f"ds_read_b128 {vr(OHT,4)}, v{LUTA}")
    CP = O["EPOS"][0] == "c" and O["ISS"] < 2
    GL = [184, 188]
    if O["ISS"] < 2:
        o(f"ds_read_b128 {vr(D0,4)}, v{LD0} offset:256")
    if CP:
        o(f"ds_read_b32 v{D1}, v{LD1} offset:{D1OFF+256}")
    o(f"v_mov_b32 v{SIX}, 0xdddd")
    o(f"s_mov_b32 s{S_ONE}, {f2u(1 / (1 + O['DELTA'])):#x}")
    for i in range(16):
        o(f"v_mov_b32 v{Z+16+i}, 0")
    for i in range(8):
        o(f"v_mov_b32 v{OH+i}, 0")
    stamp()
    o(f"s_waitcnt vmcnt({0 if O['G1POS'] == 3 else 5})")
    stamp()
    for s in range(4):
        o(f"ds_read_b128 {vr(X+4*s,4)}, v{XR+s} offset:{XO(0)}")

    def zchain(nt, fb):
        z = Z + 16 * nt
        l = [mf(z, F[fb], WC + 4 * nt, None), sp(z, OHT, PT + 8 * nt, OHT + 3, 1)]
        l += [mf(z, X + 4 * ks, WB + 4 * (2 * ks + nt), z) for ks in range(4)]
        return l

    o("s_waitcnt lgkmcnt(0)")
    for m in zchain(0, 0):
        o(m)
    if O["G1POS"] == 3:
        g1()
    if O["ISS"] == 0:
        emit_group(D0, D1, 0, CP, GL[0])
    o(f"""s_cmp_eq_u32 s{S_T}, 0
    s_cbranch_scc1 K2_DRAIN""")

    def half(par, nt):
        zc, zn = Z + 16 * nt, Z + 16 * (1 - nt)
        accp = ACC + 16 * (1 - nt)
        nb = par ^ 1
        ex = [f"v_exp_f32 v{zc+i}, v{zc+i}" for i in range(16)]
        rc = [f"v_rcp_f32 v{zc+i}, v{zc+i}" for i in range(16)]
        hm = [mf(HV, X + 4 * ks, WV + 4 * (2 * ks + nt), None if ks == 0 else HV) for ks in range(4)]
        sm = [sp(accp, OH + 4 * t, zn + 8 * t, SIX, 0) for t in range(2)]
        zm = zchain(1 - nt, nb if nt else par)
        ab = O["ABL"]
        if "H" in ab: hm = [""] * 4
        if "B" in ab: zm = zm[:2] + [""] * 4
        if "S" in ab: sm = [""] * 2
        if "P" in ab: zm[1] = ""
        if "X" in ab: ex = [""] * 16
        if "R" in ab: rc = [""] * 16
        xrd = [f"ds_read_b128 {vr(X+4*s,4)}, v{XR+s} offset:{XO(nb)}" for s in range(4)]
        ohs = [f"ds_write_b16 v{OHA}, v{ONE}", f"ds_read_b128 {vr(OH,4)}, v{OHR}",
               f"ds_read_b128 {vr(OH+4,4)}, v{OHR} offset:512", f"ds_write_b16 v{OHA}, v{ZERO}"]
        I = O["ISS"]
        ep = O["EPOS"][I // 2]
        prio(1)
        if nt == 0:
            o(f"ds_read_u8 v{LOC}, v{LD1} offset:{(par+1)*128+3}")
            o(f"ds_read_b32 v{D1}, v{LD1} offset:{D1OFF+(par+(3 if ep == 'c' else 2))*128}")
        else:
            o("s_waitcnt lgkmcnt(0)")
            if O["TST"]:
                o(f"s_mov_b32 m0, s{S_T}")
                o("s_nop 3")
                o(f"v_writelane_b32 v{TM+6}, s60, m0")
                o(f"v_writelane_b32 v{TM+7}, s62, m0")
        c = [int(x, 16) for x in O["T1"]]
        seq = ex[0:c[0]] + [hm[0]] + ex[c[0]:c[1]] + [hm[1]] + ex[c[1]:c[2]] + [hm[2]] + ex[c[2]:c[3]] + [hm[3]]
        if nt == 1:
            seq += [f"s_waitcnt vmcnt({(0 if I == 2 else 4) + (ep != 'l')})"] + xrd
        seq += ex[c[3]:c[4]] + [sm[0]] + ex[c[4]:c[5]] + [sm[1]]
        if nt == 0:
            seq += ohs
        seq += ex[c[5]:16]
        for s_ in seq:
            o(s_)
        prio(0)
        for i in range(16):
            o(f"v_add_f32 v{zc+i}, s{S_ONE}, v{zc+i}")
        if nt == 1 and ep == "c":
            for i in range(4):
                o(f"v_mov_b32 v{F[nb]+i}, v{GL[nb]+i}")
        prio(1)
        dofs = (par + (2 if I == 2 else 3)) * 128
        adv = [f"v_add_u32 v{LD0}, 0x100, v{LD0}", f"v_add_u32 v{LD1}, 0x100, v{LD1}"] if par == 1 else []
        ins, mem, _ = group(D0, D1, nb if I == 0 else par)
        e = group(D0, D1, par, GL[nb] if ep == "c" else None)[2]
        if "M" in ab:
            mem = [("", "")] * 4
            e = ""
        if nt == 0:
            o(rc[0]); o(rc[1]); o(zm[0])
            o("s_waitcnt lgkmcnt(4)")
            o(rc[2]); o(rc[3])
            o(f"v_lshl_add_u32 v{LUTA}, v{LOC}, 1, v{LUTB}")
            o(ins[4])
            o(zm[1])
            o(f"ds_read_b128 {vr(OHT,4)}, v{LUTA}")
            if ep == "e":
                o(e)
            o(rc[4]); o(rc[5]); o(rc[6]); o(zm[2])
            o(f"ds_read_b128 {vr(D0,4)}, v{LD0} offset:{dofs}")
            o(rc[7]); o(rc[8]); o(rc[9]); o(zm[3])
            o(rc[10]); o(rc[11]); o(rc[12]); o(zm[4])
            o(rc[13]); o(rc[14]); o(rc[15])
            for s_ in adv:
                o(s_)
            o(zm[5])
        else:
            o(rc[0]); o(rc[1]); o(zm[0])
            o(rc[2]); o(rc[3]); o(ins[0]); o(ins[1]); o(zm[1])
            o(rc[4]); o(rc[5]); o(ins[2]); o(ins[3])
            o(f"v_lshl_add_u32 v{OHA}, v{LOC}, 1, v{OHW}")
            if ep == "l" and I == 0:
                o(e)
            o("s_waitcnt lgkmcnt(0)")
            o(mem[0][0])
            o(zm[2])
            o(mem[0][1]); o(mem[1][0])
            o(rc[6]); o(mem[1][1]); o(mem[2][0]); o(rc[7]); o(rc[8]); o(zm[3])
            o(mem[2][1]); o(mem[3][0])
            o(rc[9]); o(mem[3][1]); o(rc[10]); o(rc[11]); o(zm[4])
            if ep == "c" or (ep == "l" and I == 2):
                o(e)
            o(rc[12]); o(rc[13]); o(rc[14]); o(zm[5])
            o(rc[15])
        prio(0)
        if O["TST"] and nt == 0:
            o("s_memrealtime s[60:61]")
            o("s_memtime s[62:63]")
        for i in range(16):
            o(f"v_mul_f32 v{zc+i}, v{zc+i}, v{HV+i}")

    if O["TST"]:
        o(f"v_mov_b32 v{TM+6}, 0")
        o(f"v_mov_b32 v{TM+7}, 0")

    stubs = []

    def loop(lab, nxt=None):
        o(f"{lab}:")
        for par in range(2):
            if par:
                o(f"{lab}_1:")
            half(par, 0)
            half(par, 1)
            o(f"s_sub_u32 s{S_T}, s{S_T}, 1")
            o(f"s_cmp_eq_u32 s{S_T}, 0")
            if nxt is None:
                o("s_cbranch_scc1 K2_DRAIN" if par == 0 else f"s_cbranch_scc0 {lab}")
            else:
                o("s_cbranch_scc1 K2_DRAIN")
                o(f"s_cmp_eq_u32 s{S_T}, s42")
                o(f"s_cselect_b32 s10, 0, s43")
                if CP:
                    o(f"s_cselect_b32 s6, 0, s45")
                o(f"s_cmp_eq_u32 s{S_T}, s41")
                o(f"s_cbranch_scc1 {nxt}_{'T' if CP else 1}" if par == 0 else f"s_cbranch_scc0 {lab}")
        if nxt is not None and CP:
            stubs.append(nxt)
            o("s_waitcnt vmcnt(5)")
            for i in range(4):
                o(f"v_mov_b32 v{F[1]+i}, v{GL[1]+i}")

    sw = O["SW"] if O["ISS"] == 0 else ""

    def loops(lab):
        if sw:
            loop(lab, lab + "S")
            O["ISS"] = 2
            loop(lab + "S")
            O["ISS"] = 0
        else:
            loop(lab)
    if sw:
        o(f"""s_lshl_b32 s41, s{S_W}, 2
        s_lshr_b32 s41, {int(sw[::-1], 16):#x}, s41
        s_and_b32 s41, s41, 15
        s_sub_u32 s41, s{S_T}, s41
        s_add_u32 s42, s41, 1
        s_mov_b32 s43, s10
        s_mov_b32 s45, s6
        s_nop 0""")
    else:
        o("s_nop 7")
    o(f"s_cmp_lt_u32 s{S_W}, 4")
    o("s_cbranch_scc1 K2_LOOP")
    keep = pmap[:]
    pmap[:] = [int(c) for c in O["PRB"]]
    loops("K2_LOOPB")
    o("s_branch K2_DRAIN")
    pmap[:] = keep
    loops("K2_LOOP")
    o("K2_DRAIN:")
    stamp(True)
    o("s_nop 1")
    for t in range(2):
        o(sp(ACC + 16, OH + 4 * t, Z + 16 + 8 * t, SIX, 0))
    o(f"""s_cmp_lt_u32 s{S_K0}, {E}
    s_cbranch_scc1 K2_NEXT
    v_and_b32 v{TM}, 31, v{LANE}
    v_lshlrev_b32 v{TM}, 2, v{TM}
    v_lshl_add_u32 v{TM}, v{H16}, 5, v{TM}
    s_nop 7""")
    NR = 13

    def silu(regs):
        for a, t in regs:
            o(f"v_mul_f32 v{t}, s{S_NL}, v{a}")
        for a, t in regs:
            o(f"v_exp_f32 v{t}, v{t}")
        for a, t in regs:
            o(f"v_add_f32 v{t}, 1.0, v{t}")
        for a, t in regs:
            o(f"v_rcp_f32 v{t}, v{t}")
        for a, t in regs:
            o(f"v_mul_f32 v{t}, v{t}, v{a}")
    silu([(ACC + i, Z + i) for i in range(NR)])
    for lo, hi in ((0, 5), (5, 9), (9, 13)):
        silu([(ACC + 16 + i, Z + 16 + i) for i in range(lo, hi)])
        for i in range(lo, hi):
            o(f"v_cvt_pk_bf16_f32 v{HV+i}, v{Z+i}, v{Z+16+i}")
            o(f"buffer_store_dword v{HV+i}, v{TM}, s[20:23], s{S_BASE} offen offset:{(8*(i//4)+i%4)*128}{fl('K2_O')}")
    if O["TST"]:
        o(f"""s_lshl_b32 s58, s2, 3
        s_add_u32 s58, s58, s{S_W}
        s_lshl_b32 s58, s58, 9
        s_add_u32 s58, s58, {SOFF + (1 << 20)}
        v_lshlrev_b32 v{TM+5}, 2, v{LANE}
        buffer_store_dword v{TM+6}, v{TM+5}, s[12:15], s58 offen
        buffer_store_dword v{TM+7}, v{TM+5}, s[12:15], s58 offen offset:256""")
    stamp_out(12, S_W, 8, TM)
    o("""K2_END:
    s_endpgm""")
    for lab in stubs:
        o(f"{lab}_T:")
        o("s_waitcnt vmcnt(5)")
        for i in range(4):
            o(f"v_mov_b32 v{F[0]+i}, v{GL[0]+i}")
        o(f"s_branch {lab}_1")
    def epoch(t):
        o(f"""s_mov_b64 exec, 1
        v_mov_b32 v{t}, {KTAG:#x}
        buffer_atomic_add v{t}, v{ZERO}, s[12:15], 0 offen sc1
        s_mov_b64 exec, -1""")
    o("K2_EP:")
    epoch(PA)
    o("s_branch K2_EPR")
    o(f"""K2_G0:
    ds_read_b128 {vr(D0,4)}, v{LD0}
    ds_read_b32 v{D1}, v{LD1} offset:{D1OFF}
    s_waitcnt lgkmcnt(0)""")
    emit_group(D0, D1, 0)
    o("s_branch K2_G0R")
    o(f"""K2_P2:
    s_cmp_lg_u32 s{S_TIER}, 0
    s_mov_b32 s{S_TIER}, 0
    s_cbranch_scc1 K2_P2R
    s_mov_b32 s{S_TIER}, 1
    s_barrier""")
    fill(0, 9)
    o(f"""v_add_u32 v{KQ}, 32, v{KQ}
    s_waitcnt vmcnt(0) lgkmcnt(0)
    s_barrier""")
    for i in range(7):
        o(f"v_subrev_u32 v{RK1[i]}, 32, v{RK1[i]}")
        img_write(i)
    o(f"s_add_u32 s57, s57, {2*TOFF}")
    o("s_branch K2_PASS")
    o(f"""K2_PR:
    s_sub_u32 s{S_C}, s{S_C}, 1
    s_cbranch_scc1 K2_TO
    s_mov_b64 exec, vcc""")
    polls()
    o(f"""s_waitcnt vmcnt(0)
    s_branch K2_PV
    K2_TO:""")
    epoch(PA)
    for j in range(4):
        o(f"s_mov_b64 s[{MK(j)}:{MK(j)+1}], 0")
    o(f"ds_write_b32 v{CNB}, v{ZERO} offset:256")
    o(f"""s_branch K2_X7
    K2_TN:
    s_add_u32 s{S_TIER}, s{S_TIER}, 1
    s_cmp_ge_u32 s{S_TIER}, 3
    s_cbranch_scc1 K2_OV""")
    for j in range(4):
        o(f"s_mov_b64 exec, s[{MK(j)}:{MK(j)+1}]")
        o(f"v_cmp_lt_u32_sdwa s[{MK(j)}:{MK(j)+1}], s40, v{TQ(j)} src0_sel:DWORD src1_sel:BYTE_2")
        o(f"s_add_u32 s{50+j}, s{50+j}, {TOFF}")
    o(f"""s_waitcnt lgkmcnt(0)
    K2_TR:
    s_sub_u32 s{S_C}, s{S_C}, 1
    s_cbranch_scc1 K2_OV""")
    tloads()
    o(f"""s_waitcnt vmcnt(0)
    s_branch K2_TV
    K2_OV:
    s_mov_b64 exec, -1
    ds_write_b32 v{CNB}, v{ZERO} offset:256
    s_branch K2_B3""")
    o(f"""K2_FB:
    s_mov_b32 s{S_K0}, 0
    s_mov_b32 s{S_T}, s{S_LB}
    s_mov_b32 s{S_FLAG}, 1
    s_branch K2_R1
    K2_NEXT:
    s_mov_b32 s10, {N*128}
    s_mov_b32 s6, {E*32}
    s_waitcnt vmcnt(0) lgkmcnt(0)
    s_barrier
    v_mov_b32 v{TM+2}, {L_CNT}
    v_lshl_add_u32 v{TM+3}, v{LANE}, 2, v{TM+2}
    v_mul_u32_u24 v{TM+4}, {SG}, v{LANE}
    v_add_u32 v{TM+4}, {L_D0-32*SG}, v{TM+4}
    ds_write_b32 v{TM+3}, v{TM+4}
    v_add_u32 v{TM+4}, {32*4}, v{TM+4}
    v_mov_b32 v{X}, 127
    v_mov_b32 v{X+1}, 4
    s_mov_b32 s45, {E}
    s_waitcnt lgkmcnt(0)
    s_barrier
    K2_SCAN:
    v_add_u32 v{TM+6}, s{S_K0}, v0
    v_lshlrev_b32 v{TM+5}, 2, v{TM+6}
    buffer_load_dword v{X+2}, v{TM+5}, s[96:99], 0 offen
    buffer_load_dword v{X+3}, v{TM+5}, s[16:19], 0 offen
    v_cmp_gt_u32 s[46:47], s45, v{TM+6}
    v_lshlrev_b32 v{TM+6}, 5, v{TM+6}
    s_add_u32 s{S_K0}, s{S_K0}, 512
    s_waitcnt vmcnt(0)
    v_mul_hi_u32 v{X+4}, v{X+2}, s{S_M32}
    v_lshrrev_b32 v{X+5}, 3, v{X+4}
    v_cmp_eq_u32 vcc, s{S_BK}, v{X+5}
    v_mad_u32_u24 v{X+5}, v{X+4}, s{S_3125}, v{X}
    v_lshrrev_b32 v{X+5}, 7, v{X+5}
    v_sub_u32 v{X+5}, v{X+2}, v{X+5}
    v_and_b32 v{X+4}, 7, v{X+4}
    v_lshl_add_u32 v{X+4}, v{X+4}, 4, v{TM+2}
    v_lshlrev_b32 v{X+5}, 27, v{X+5}
    v_lshl_or_b32 v{X+5}, v{X+3}, 7, v{X+5}
    s_and_b64 exec, vcc, s[46:47]
    ds_add_rtn_u32 v{X+4}, v{X+4}, v{X+1} offset:128
    s_waitcnt lgkmcnt(0)
    ds_write2st64_b32 v{X+4}, v{X+5}, v{TM+6} offset0:0 offset1:{D1O}
    s_mov_b64 exec, -1
    s_waitcnt lgkmcnt(0)
    s_barrier
    ds_read_b32 v{X+4}, v{TM+3}
    s_waitcnt lgkmcnt(0)
    s_barrier
    v_cmp_lt_u32 vcc, v{TM+4}, v{X+4}
    s_cmp_ge_u32 s{S_K0}, s45
    s_cbranch_scc1 K2_RN
    s_cbranch_vccz K2_SCAN
    K2_RN:
    s_lshr_b32 s46, s{S_SUB8}, 1
    s_add_u32 s46, s46, 32
    v_readlane_b32 s{S_T}, v{X+4}, s46""")
    ldparts()
    o(f"""v_add_u32 v{LD0}, s{S_LB}, v{LD0}
    v_add_u32 v{LD1}, s{S_LB}, v{LD1}
    v_add_u32 v{X}, s{S_T}, v{L4}
    v_mov_b32 v{X+1}, 0xf87fff80
    v_mov_b32 v{X+2}, 0x1ffffe0
    s_sub_u32 s{S_T}, s{S_T}, s{S_LB}
    s_add_u32 s{S_T}, s{S_T}, 127
    s_lshr_b32 s{S_T}, s{S_T}, 7
    ds_write2st64_b32 v{X}, v{X+1}, v{X+2} offset0:0 offset1:{D1O}
    ds_write2st64_b32 v{X}, v{X+1}, v{X+2} offset0:1 offset1:{D1O+1}
    s_branch K2_G0""")

    head = f"""; Edge-gated MPNN layer in one launch: every workgroup files its chunk of edges by destination
; @launch kernel={K2} grid=({NB},1,1) block=(512,1,1) lds={K2_LDS}
.amdgcn_target "amdgcn-amd-amdhsa--gfx950"
.text
"""

    def desc(name, vg):
        return f""".amdhsa_kernel {name}
  .amdhsa_next_free_vgpr {vg}
  .amdhsa_next_free_sgpr 102
  .amdhsa_accum_offset {vg}
  .amdhsa_group_segment_fixed_size 0
  .amdhsa_kernarg_size 80
  .amdhsa_user_sgpr_count 2
  .amdhsa_user_sgpr_kernarg_segment_ptr 1
  .amdhsa_system_sgpr_workgroup_id_x 1
  .amdhsa_float_denorm_mode_32 3
.end_amdhsa_kernel
"""
    tail = '.section .rodata,"a"\n.p2align 6\n' + desc(K2, 256)
    return head + o.text() + tail


if __name__ == "__main__":
    out = sys.argv[1]
    opt = {}
    for a in sys.argv[2:]:
        k, v = a.split("=", 1)
        opt[k] = int(v, 0) if isinstance(DEF[k], int) else float(v) if isinstance(DEF[k], float) else v.replace("+", " ")
    open(out, "w").write(gen(opt))
```
